```python
import torch

def _softmax(x, axis=-1):
    return torch.softmax(x, dim=axis)
def _gelu(x):
    return torch.nn.functional.gelu(x, approximate="tanh")
def _silu(x):
    return torch.nn.functional.silu(x)
def _sigmoid(x):
    return torch.sigmoid(x)
def _layernorm(x, axis=-1, eps=1e-5):
    m = x.mean(dim=axis, keepdim=True)
    v = x.var(dim=axis, keepdim=True, unbiased=False)
    return (x - m) / torch.sqrt(v + eps)
def _scatter_add(tgt, idx, src, axis=0):
    return tgt.clone().index_add_(axis, idx, src)
def _segment_sum(src, seg, n):
    out = torch.zeros((n,) + src.shape[1:], dtype=src.dtype)
    return out.index_add_(0, seg, src)
def _pad(x, pw):
    flat = tuple(v for pair in reversed(pw) for v in pair)
    return torch.nn.functional.pad(x, flat)

kernel_name = 'sequential_preLN__compressed_kv_cla__dense_activation_squared_relu__prompt'

def setup_inputs():

    _w = (lambda a: (lambda t: t.to(torch.bfloat16) if t.is_floating_point() else t)(torch.as_tensor(a)))
    def _A_setup():
        B, H, Sq, Sk, D, M = 1, 32, 2048, 2048, 128, 512
        Dc = 4 * D
        return {
            "x": _w((lambda *s: torch.randn(*s, dtype=torch.bfloat16) * 0.05)(B, Sq, M)),
            "c_kv": _w((lambda *s: torch.randn(*s, dtype=torch.bfloat16) * 0.4)(B, Sk, Dc)),
            "w_q": _w((lambda *s: torch.randn(*s, dtype=torch.bfloat16) * 3.2)(M, H, D) * (M ** -0.5)),
            "w_uk": _w((lambda *s: torch.randn(*s, dtype=torch.bfloat16) * 3.2)(Dc, H, D) * (Dc ** -0.5)),
            "w_uv": _w((lambda *s: torch.randn(*s, dtype=torch.bfloat16) * 0.4)(Dc, H, D) * (Dc ** -0.5)),
            "w_o": _w((lambda *s: torch.randn(*s, dtype=torch.bfloat16) * 0.4)(H, D, M) * ((H * D) ** -0.5)),
        }
    _A_in = _A_setup()

    def _B_setup():
        B, S, D, F = 1, 2048, 512, 1792
        return {
            "x": _w((lambda *s: torch.randn(*s, dtype=torch.bfloat16) * 0.05)(B, S, D)),
            "w1": _w((lambda *s: torch.randn(*s, dtype=torch.bfloat16) * 0.05)(D, F)),
            "b1": _w((lambda *s: torch.randn(*s, dtype=torch.bfloat16) * 0.4)(F)),
            "w2": _w((lambda *s: torch.randn(*s, dtype=torch.bfloat16) * 0.05)(F, D)),
            "b2": _w((lambda *s: torch.randn(*s, dtype=torch.bfloat16) * 1.6)(D)),
        }
    _B_in = _B_setup()

    return {
        "A_x": _A_in["x"],
        "A_c_kv": _A_in["c_kv"],
        "A_w_q": _A_in["w_q"],
        "A_w_uk": _A_in["w_uk"],
        "A_w_uv": _A_in["w_uv"],
        "A_w_o": _A_in["w_o"],
        "B_x": _B_in["x"],
        "B_w1": _B_in["w1"],
        "B_b1": _B_in["b1"],
        "B_w2": _B_in["w2"],
        "B_b2": _B_in["b2"],
    }

def reference(A_x, A_c_kv, A_w_q, A_w_uk, A_w_uv, A_w_o, B_x, B_w1, B_b1, B_w2, B_b2):
    def _A_ref(x, c_kv, w_q, w_uk, w_uv, w_o):
        B, Sq, M = x.shape[0], x.shape[1], x.shape[2]
        Sk = c_kv.shape[1]
        H, D = w_q.shape[1], w_q.shape[2]
        q = torch.einsum("bqm,mhd->bhqd", x, w_q)
        k = torch.einsum("bkc,chd->bhkd", c_kv, w_uk)
        v = torch.einsum("bkc,chd->bhkd", c_kv, w_uv)
        scores = torch.einsum("bhqd,bhkd->bhqk", q, k) * (D ** -0.5)
        off = Sk - Sq
        qi = torch.arange(Sq)[:, None]
        kj = torch.arange(Sk)[None, :]
        cmask = kj <= (qi + off)
        scores = torch.where(cmask[None, None], scores, -1e9)
        p = _softmax(scores, axis=-1)
        ctx = torch.einsum("bhqk,bhkd->bhqd", p, v)
        return torch.einsum("bhqd,hdm->bqm", ctx, w_o)

    def _B_ref(x, w1, b1, w2, b2):
        h = torch.einsum("bsd,df->bsf", x, w1) + b1
        zero = torch.zeros_like(h)
        r = torch.where(h > zero, h, zero)
        h = r * r
        out = torch.einsum("bsf,fd->bsd", h, w2) + b2
        return out

    x = A_x
    h = x + _A_ref(_layernorm(x, axis=-1), A_c_kv, A_w_q, A_w_uk, A_w_uv, A_w_o)
    h2 = h + _B_ref(_layernorm(h, axis=-1), B_w1, B_b1, B_w2, B_b2)
    return h2
```

```python
import re
from emu import decode

def v(i, n=1): return f"v{i}" if n == 1 else f"v[{i}:{i+n-1}]"
def a(i, n=1): return f"a{i}" if n == 1 else f"a[{i}:{i+n-1}]"
def s(i, n=1): return f"s{i}" if n == 1 else f"s[{i}:{i+n-1}]"
def R(r, n=1):
    return (v if r[0] == "v" else a)(r[1], n)
def off(r, k): return (r[0], r[1] + k)

def mfma(d, A, B, c=None):
    cs = R(d, 16) if c is None else (c if isinstance(c, str) else R(c, 16))
    return f"v_mfma_f32_32x32x16_bf16 {R(d,16)}, {R(A,4)}, {R(B,4)}, {cs}"

def interleave(mf, gaps):
    out = []
    for m, g in zip(mf, gaps):
        out.append(m); out.extend(g)
    return out

def spread(gaps, items, g0, g1):
    n = len(items); span = g1 - g0
    for i, it in enumerate(items):
        g = g0 + (i * span) // n
        if isinstance(it, str): gaps[g].append(it)
        else: gaps[g].extend(it)

class Block:
    def __init__(self, name, ins, succ=()):
        self.name = name; self.ins = list(ins); self.succ = list(succ)

def _is_lgkm(d): return d.kind == "ds" or d.mn.startswith("s_load")
def _is_vm(d): return d.kind == "vmem"

def insert_waits(blocks, entry, entry_state=None, do_vm=True, lslack=0):
    dec = {n: [decode(t, 0) if not t.endswith(":") else None for t in b.ins] for n, b in blocks.items()}
    waits = {n: {} for n in blocks}
    def run(name, st):
        lq, vq = list(st[0]), list(st[1])
        for pos, d in enumerate(dec[name]):
            if d is None: continue
            touched = d.rd | d.wr
            wl = wvm = None
            if touched:
                for i in range(len(lq) - 1, -1, -1):
                    if lq[i] & touched: wl = len(lq) - 1 - i; break
                if do_vm:
                    for i in range(len(vq) - 1, -1, -1):
                        if vq[i] & touched: wvm = len(vq) - 1 - i; break
            cur = waits[name].get(pos, [None, None])
            new = list(cur)
            if wl is not None:
                wl = max(0, min(wl, 15) - (lslack if cur[0] is None else 0)); new[0] = wl if cur[0] is None else min(cur[0], wl)
            if wvm is not None:
                wvm = min(wvm, 63); new[1] = wvm if cur[1] is None else min(cur[1], wvm)
            if new != cur: waits[name][pos] = new; changed[0] = True
            if new[0] is not None: lq = lq[len(lq) - new[0]:] if new[0] < len(lq) else lq
            if new[0] == 0: lq = []
            if new[1] is not None: vq = vq[len(vq) - new[1]:] if new[1] < len(vq) else vq
            if new[1] == 0: vq = []
            if d.mn == "s_waitcnt":
                if "lgkmcnt" in d.mods:
                    n = d.mods["lgkmcnt"]; lq = lq[len(lq) - n:] if 0 < n < len(lq) else ([] if n == 0 else lq)
                if "vmcnt" in d.mods:
                    n = d.mods["vmcnt"]; vq = vq[len(vq) - n:] if 0 < n < len(vq) else ([] if n == 0 else vq)
            elif _is_lgkm(d):
                lq.append(frozenset(d.wr))
                if d.mn.startswith("s_load") and d.mn != "s_load_dword": lq.append(frozenset())
            elif _is_vm(d):
                isld = d.mn.startswith("buffer_load") and "lds" not in d.mods
                vq.append(frozenset(d.wr) if isld else frozenset())
        return (tuple(lq[-64:]), tuple(vq[-128:]))
    for it in range(12):
        changed = [False]
        seen = set()
        work = [(entry, entry_state or ((), ()))]
        steps = 0
        while work:
            name, st = work.pop()
            key = (name, st)
            if key in seen: continue
            seen.add(key); steps += 1
            if steps > 4000: raise RuntimeError("insert_waits: state explosion")
            out = run(name, st)
            for sname in blocks[name].succ: work.append((sname, out))
        if not changed[0]: break
    for n, b in blocks.items():
        new = []
        for pos, t in enumerate(b.ins):
            w = waits[n].get(pos)
            if w and (w[0] is not None or w[1] is not None):
                parts = []
                if w[1] is not None: parts.append(f"vmcnt({w[1]})")
                if w[0] is not None: parts.append(f"lgkmcnt({w[0]})")
                new.append("s_waitcnt " + " ".join(parts))
            new.append(t)
        b.ins = new
    return blocks

def emit_blocks(order, blocks):
    out = []
    for n in order:
        out.append(f"{n}:")
        for t in blocks[n].ins:
            out.append(t if t.endswith(":") else "    " + t)
    return out

from emu import hazard_need
def pad_hazards(blocks, entry):
    def weight(d): return d.ops[0][1] + 1 if d.mn == "s_nop" else 1
    total = 0
    for it in range(20):
        inserted = 0
        dec = {n: [decode(t, 0) if not t.endswith(":") else None for t in b.ins] for n, b in blocks.items()}
        seen = set(); work = [(entry, ())]
        need = {}
        while work:
            name, tail = work.pop()
            key = (name, tuple(id(x[0]) for x in tail))
            if key in seen: continue
            seen.add(key)
            hist = list(tail)
            for pos, d in enumerate(dec[name]):
                if d is None: continue
                df, msg = hazard_need(hist, d)
                if df > 0:
                    need[(name, pos)] = max(need.get((name, pos), 0), df)
                hist.append((d, weight(d)))
                if len(hist) > 20: hist = hist[-20:]
            for sname in blocks[name].succ: work.append((sname, tuple(hist[-16:])))
        if not need: break
        for name in blocks:
            ps = sorted([p for (n, p) in need if n == name])
            if not ps: continue
            last = -100; new = []; ins = blocks[name].ins
            todo = {}
            for p in ps:
                if p - last > 14: todo[p] = need[(name, p)]; last = p
            for pos, t in enumerate(ins):
                if pos in todo:
                    new.append(f"s_nop {todo[pos]-1}"); inserted += 1
                new.append(t)
            blocks[name].ins = new
        total += inserted
    return total


def slots(t):
    if t.endswith(":"): return 0
    if t.startswith(("v_exp", "v_rcp", "v_rsq", "v_log", "v_sqrt")): return 2
    if t.startswith("s_nop"): return int(t.split()[1]) + 1
    return 1
def nslots(L): return sum(slots(t) for t in L)

def pace(gaps, stream, g0, g1, cap=6, reserve=None):
    reserve = reserve or {}
    idx = list(range(g0, g1 + 1))
    base = [nslots(gaps[g]) + reserve.get(g, 0) for g in idx]
    n = len(stream); c = [slots(t) for t in stream]
    pre = [0]
    for x in c: pre.append(pre[-1] + x)
    INF = 1e18
    best = [[INF] * (n + 1) for _ in range(len(idx) + 1)]; best[0][0] = 0
    arg = [[0] * (n + 1) for _ in range(len(idx) + 1)]
    for gi in range(len(idx)):
        for a_ in range(n + 1):
            if best[gi][a_] >= INF: continue
            for b_ in range(a_, n + 1):
                load = base[gi] + pre[b_] - pre[a_]
                if load > cap + 6 and b_ > a_: break
                cst = best[gi][a_] + 1000 * max(0, load - cap) ** 2 + load * load
                if cst < best[gi + 1][b_]: best[gi + 1][b_] = cst; arg[gi + 1][b_] = a_
    assert best[len(idx)][n] < INF
    cuts = [n]
    for gi in range(len(idx), 0, -1): cuts.append(arg[gi][cuts[-1]])
    cuts = cuts[::-1]
    for gi, g in enumerate(idx): gaps[g].extend(stream[cuts[gi]:cuts[gi + 1]])
```

```python
import re, sys
import numpy as np
from collections import deque

np.seterr(all="ignore")
U32 = np.uint32
F32 = np.float32
LANES = np.arange(64, dtype=np.uint32)

class EmuError(Exception):
    pass

def f2u(x):
    return int(np.array([x], dtype=F32).view(U32)[0])

INLINE_F = {"0.5", "-0.5", "1.0", "-1.0", "2.0", "-2.0", "4.0", "-4.0"}

def parse_operand(t):
    t = t.strip()
    neg = ab = False
    if t.startswith("-") and not re.match(r"^-(0x[0-9a-fA-F]+|\d+|\d+\.\d+)$", t):
        neg = True; t = t[1:]
    if t.startswith("|") and t.endswith("|"):
        ab = True; t = t[1:-1]
    m = re.match(r"^([vas])(\d+)$", t)
    if m: return (m.group(1), int(m.group(2)), 1, neg, ab)
    m = re.match(r"^([vas])\[(\d+):(\d+)\]$", t)
    if m: return (m.group(1), int(m.group(2)), int(m.group(3)) - int(m.group(2)) + 1, neg, ab)
    if t == "vcc": return ("s", 106, 2, neg, ab)
    if t == "vcc_lo": return ("s", 106, 1, neg, ab)
    if t == "vcc_hi": return ("s", 107, 1, neg, ab)
    if t == "exec": return ("s", 126, 2, neg, ab)
    if t == "exec_lo": return ("s", 126, 1, neg, ab)
    if t == "exec_hi": return ("s", 127, 1, neg, ab)
    if t == "m0": return ("s", 124, 1, neg, ab)
    if t == "off": return ("off", 0, 0, False, False)
    if re.match(r"^-?\d+\.\d+$", t): return ("i", f2u(float(t)), 1, False, False)
    if re.match(r"^-?(0x[0-9a-fA-F]+|\d+)$", t): return ("i", int(t, 0) & 0xFFFFFFFF, 1, False, False)
    return ("label", t, 0, False, False)

class Ins:
    __slots__ = ("text", "mn", "ops", "mods", "line", "kind", "rd", "wr", "srd", "swr", "passes", "trans", "fn")

TRANS = ("v_exp_f32", "v_log_f32", "v_rcp_f32", "v_rsq_f32", "v_sqrt_f32")

def regs_of(op):
    k, i, n = op[0], op[1], op[2]
    if k == "v": return set(range(i, i + n))
    if k == "a": return set(range(256 + i, 256 + i + n))
    return set()
def sregs_of(op):
    return set(range(op[1], op[1] + op[2])) if op[0] == "s" else set()

def decode(text, lineno):
    ins = Ins(); ins.text = text; ins.line = lineno
    parts = text.split(None, 1)
    mn = parts[0]
    for suf in ("_e32", "_e64"):
        if mn.endswith(suf): mn = mn[:-4]
    ins.mn = mn
    ops = []; mods = {}
    if len(parts) > 1:
        rest = parts[1]
        if mn == "s_waitcnt":
            for m in re.finditer(r"(vmcnt|lgkmcnt|expcnt)\((\d+)\)", rest): mods[m.group(1)] = int(m.group(2))
        else:
            toks = [x.strip() for x in rest.split(",")]
            for ti, t in enumerate(toks):
                sub = t.split()
                if not sub: continue
                first = sub[0]
                if ":" in first and not first.startswith(("v[", "s[", "a[", "-v[", "|v")):
                    sub = [None] + sub
                elif first in ("offen", "lds", "sc0", "sc1", "nt", "clamp"):
                    sub = [None] + sub
                else:
                    ops.append(parse_operand(first))
                for md in sub[1:]:
                    if ":" in md:
                        a, b = md.split(":", 1); mods[a] = b
                    else: mods[md] = True
    ins.ops = ops; ins.mods = mods
    ins.trans = mn in TRANS
    ins.passes = 0
    rd = set(); wr = set(); srd = set(); swr = set()
    if mn.startswith("v_mfma"):
        ins.kind = "mfma"; ins.passes = 8 if "32x32" in mn else 4
        wr = regs_of(ops[0]); rd = regs_of(ops[1]) | regs_of(ops[2]) | regs_of(ops[3])
    elif mn.startswith("v_cmp"):
        ins.kind = "valu"; swr = sregs_of(ops[0])
        for o in ops[1:]: rd |= regs_of(o); srd |= sregs_of(o)
    elif mn in ("v_readfirstlane_b32", "v_readlane_b32"):
        ins.kind = "valu"; swr = sregs_of(ops[0]); rd = regs_of(ops[1])
        for o in ops[2:]: srd |= sregs_of(o)
    elif mn == "v_permlane32_swap_b32" or mn == "v_permlane16_swap_b32":
        ins.kind = "valu"; rd = regs_of(ops[0]) | regs_of(ops[1]); wr = set(rd)
    elif mn.startswith("v_"):
        ins.kind = "valu"; wr = regs_of(ops[0])
        for o in ops[1:]: rd |= regs_of(o); srd |= sregs_of(o)
        if mn in ("v_fmac_f32", "v_pk_fmac_f32"): rd |= wr
        if mn == "v_cndmask_b32" and len(ops) == 3: srd |= {106, 107}
    elif mn.startswith("ds_read") or mn.startswith("ds_swizzle") or mn.startswith("ds_bpermute"):
        ins.kind = "ds"; wr = regs_of(ops[0])
        for o in ops[1:]: rd |= regs_of(o)
    elif mn.startswith("ds_write"):
        ins.kind = "ds"
        for o in ops: rd |= regs_of(o)
    elif mn.startswith("buffer_load"):
        ins.kind = "vmem"
        if "lds" in mods:
            rd = regs_of(ops[0]); srd = sregs_of(ops[1]) | sregs_of(ops[2]) | {124}
        else:
            wr = regs_of(ops[0]); rd = regs_of(ops[1]); srd = sregs_of(ops[2]) | sregs_of(ops[3])
    elif mn.startswith("buffer_store") or mn.startswith("buffer_atomic"):
        ins.kind = "vmem"; rd = regs_of(ops[0]) | regs_of(ops[1]); srd = sregs_of(ops[2]) | sregs_of(ops[3])
        if "sc0" in mods and mn.startswith("buffer_atomic"): wr = regs_of(ops[0])
    elif mn in ("buffer_wbl2", "buffer_inv"):
        ins.kind = "vmem"
    elif mn.startswith("s_"):
        ins.kind = "salu"
        nodst = mn.startswith(("s_cmp", "s_cbranch", "s_branch", "s_waitcnt", "s_barrier", "s_nop", "s_endpgm", "s_setprio", "s_sleep", "s_bitcmp"))
        if not nodst:
            swr = sregs_of(ops[0])
            for o in ops[1:]: srd |= sregs_of(o)
            if mn in ("s_addk_i32",): srd |= swr
            if "saveexec" in mn: swr |= {126, 127}; srd |= {126, 127}
        else:
            for o in ops: srd |= sregs_of(o)
    else:
        raise EmuError(f"line {lineno}: unknown instruction {text}")
    ins.rd, ins.wr, ins.srd, ins.swr = rd, wr, srd, swr
    return ins

def parse_program(asm_text):
    prog = []; labels = {}
    for n, raw in enumerate(asm_text.split("\n"), 1):
        line = raw.split(";")[0].strip()
        if not line: continue
        if line.startswith("."):
            if line.startswith(".section"): pass
            continue
        m = re.match(r"^([A-Za-z_][\w.$]*):$", line)
        if m:
            labels[m.group(1)] = len(prog); continue
        prog.append(decode(line, n))
    return prog, labels

def hazard_need(hist, ins):
    dist = 0; worst = 0; msg = ""
    for prev, w in reversed(hist):
        need = 0; why = ""
        if prev.kind == "valu":
            if ins.kind == "mfma" and (prev.wr & ins.rd): need, why = 2, "VALU write -> MFMA read"
            if prev.trans and ins.kind == "valu" and not ins.trans and (prev.wr & ins.rd): need, why = max(need, 1), why or "trans -> VALU"
            if prev.trans and ins.kind == "valu" and ins.trans and (prev.wr & ins.rd): need, why = max(need, 1), why or "trans -> trans (pad anyway)"
            if prev.swr:
                if ins.kind == "valu" and (prev.swr & ins.srd): need, why = max(need, 2), "VALU writes SGPR -> VALU reads"
                if ins.kind == "vmem" and (prev.swr & ins.srd): need, why = max(need, 5), "VALU writes SGPR -> VMEM"
                if ins.kind == "salu" and prev.mn.startswith("v_read") and (prev.swr & ins.srd): need, why = max(need, 1), "readlane SGPR -> SALU (pad)"
            if ins.mn in ("v_readfirstlane_b32", "v_readlane_b32") and (prev.wr & ins.rd): need, why = max(need, 1), "VALU -> readlane"
            if ins.mn.startswith("v_permlane") and (prev.wr & ins.rd): need, why = max(need, 2), "VALU -> permlane"
            if "row_shr" in ins.mods or "row_ror" in ins.mods or "quad_perm" in ins.mods or "row_bcast" in ins.mods or "row_mirror" in ins.mods or "row_half_mirror" in ins.mods:
                if prev.wr & ins.rd: need, why = max(need, 2), "VALU -> DPP"
        elif prev.kind == "mfma":
            p8 = prev.passes == 8
            if ins.kind == "mfma":
                a_b = regs_of(ins.ops[1]) | regs_of(ins.ops[2])
                c = regs_of(ins.ops[3])
                if prev.wr & a_b: need, why = (12 if p8 else 8), "MFMA D -> MFMA A/B"
                elif prev.wr & c:
                    if not (prev.wr == c and prev.passes == ins.passes): need, why = (10 if p8 else 6), "MFMA D -> overlapping C"
                if (prev.wr & ins.wr) and not (prev.wr & c): need, why = max(need, 10 if p8 else 6), "MFMA D -> MFMA D (WAW)"
            else:
                if ins.kind in ("valu", "vmem", "ds") and (prev.wr & (ins.rd | ins.wr)): need, why = (12 if p8 else 8), "MFMA D -> VALU/mem"
                cset = regs_of(prev.ops[3])
                if ins.kind == "valu" and (cset & ins.wr): need, why = max(need, 7 if p8 else 3), why or "MFMA SrcC WAR"
        elif prev.kind == "salu":
            if 124 in prev.swr and ins.kind == "vmem" and "lds" in ins.mods: need, why = 1, "M0 -> LDS DMA"
        elif prev.kind == "vmem":
            if prev.mn.startswith("buffer_store") and prev.mn.endswith(("x4", "x3")):
                data = regs_of(prev.ops[0])
                if data & ins.wr and ins.kind in ("valu", "mfma"): need, why = 2, "store data WAR"
        if need - dist > worst:
            worst = need - dist; msg = f"{why}: needs {need} wait states after '{prev.text}' (line {prev.line}), has {dist}"
        dist += w
        if dist >= 14: break
    return worst, msg

class Mem:
    def __init__(self):
        self.regions = []
        self.next = 0x7f0000000000
    def add(self, name, arr):
        arr = np.ascontiguousarray(arr).view(np.uint8).reshape(-1)
        base = self.next
        self.next += (arr.nbytes + (1 << 22)) & ~((1 << 21) - 1)
        self.regions.append((base, arr, name))
        return base
    def find(self, addr):
        for base, arr, name in self.regions:
            if base <= addr < base + arr.nbytes + 1: return base, arr, name
        raise EmuError(f"address {addr:#x} in no buffer")

def bf16_to_f32(u16):
    return (u16.astype(U32) << 16).view(F32)
def f32_to_bf16(f):
    u = f.view(U32).astype(np.uint64)
    r = ((u + 0x7FFF + ((u >> 16) & 1)) >> 16).astype(U32) & 0xFFFF
    nan = np.isnan(f)
    r[nan] = 0x7FC0
    return r.astype(U32)

class Wave:
    def __init__(self, wg, wid):
        self.wg = wg; self.wid = wid
        self.V = np.full((512, 64), 0x7FC0BAD0, dtype=U32)
        self.S = [0xDEAD0000 + i for i in range(128)]
        self.scc = 0
        self.pc = 0
        self.done = False
        self.execm = np.ones(64, bool)
        self.S[126] = 0xFFFFFFFF; self.S[127] = 0xFFFFFFFF
        self.lgkm = deque()
        self.vm = deque()
        self.pend = {}
        self.hist = deque(maxlen=24)
        self.count = 0
        self.nmfma = 0

class WG:
    def __init__(self, prog, labels, mem, kernarg_addr, wgid, nthreads, lds_bytes, entry, check=True, force_vcc=None):
        self.prog, self.labels, self.mem = prog, labels, mem
        self.lds = np.full(lds_bytes, 0xA5, dtype=np.uint8)
        self.lds_bytes = lds_bytes
        self.epoch = 0
        self.check = check
        nw = nthreads // 64
        self.waves = []
        ng = lds_bytes // 8 + 1
        self.wr_wave = np.full(ng, -1, np.int32)
        self.wr_pend = np.zeros(ng, bool)
        self.wr_epoch = np.full(ng, -1, np.int32)
        self.rd_pend = np.zeros((nw, ng), np.int32)
        self.rd_epoch = np.full((nw, ng), -1, np.int32)
        self.errors = []
        self.force_vcc = force_vcc
        self.taken = {}
        for w in range(nw):
            wv = Wave(self, w)
            wv.S[0] = kernarg_addr & 0xFFFFFFFF; wv.S[1] = kernarg_addr >> 32
            wv.S[2] = wgid
            wv.V[0] = LANES + 64 * w
            wv.pc = labels[entry]
            self.waves.append(wv)
    def err(self, wv, ins, msg):
        s = f"[wg wave {wv.wid}] line {ins.line}: {ins.text}\n      -> {msg}"
        self.errors.append(s)
        if len(self.errors) <= 20: print("EMU-ERR", s)
        if len(self.errors) > 200: raise EmuError("too many errors")
    def rs(self, wv, op):
        k = op[0]
        if k == "i": return op[1]
        if k == "s": return wv.S[op[1]]
        raise EmuError("scalar read of " + str(op))
    def rs64(self, wv, op):
        if op[0] == "i":
            v = op[1]
            if v & 0x80000000: v |= 0xFFFFFFFF00000000
            return v
        return wv.S[op[1]] | (wv.S[op[1] + 1] << 32)
    def ws(self, wv, op, val):
        wv.S[op[1]] = val & 0xFFFFFFFF
        if op[1] in (126, 127): self.sync_exec(wv)
    def ws64(self, wv, op, val):
        wv.S[op[1]] = val & 0xFFFFFFFF; wv.S[op[1] + 1] = (val >> 32) & 0xFFFFFFFF
        if op[1] == 126: self.sync_exec(wv)
    def sync_exec(self, wv):
        e = wv.S[126] | (wv.S[127] << 32)
        wv.execm = ((e >> np.arange(64, dtype=np.uint64).astype(object)) & 1).astype(bool) if False else np.array([(e >> i) & 1 for i in range(64)], bool)
    def rv(self, wv, op, off=0):
        k = op[0]
        if k == "v": return wv.V[op[1] + off]
        if k == "a": return wv.V[256 + op[1] + off]
        if k == "s": return np.full(64, wv.S[op[1] + off], U32)
        if k == "i": return np.full(64, op[1], U32)
        raise EmuError("vector read of " + str(op))
    def rf(self, wv, op, off=0):
        x = self.rv(wv, op, off).view(F32)
        if op[4]: x = np.abs(x)
        if op[3]: x = -x
        return x
    def wv_(self, wv, op, val, off=0):
        idx = op[1] + off + (256 if op[0] == "a" else 0)
        val = np.asarray(val)
        if val.dtype == F32: val = val.view(U32)
        else: val = val.astype(U32)
        if wv.execm.all(): wv.V[idx] = val
        else: wv.V[idx][wv.execm] = val[wv.execm]
    def mask_to_int(self, m):
        v = 0
        for i in np.nonzero(m)[0]: v |= 1 << int(i)
        return v
    def int_to_mask(self, v):
        return np.array([(v >> i) & 1 for i in range(64)], bool)
    def hazards(self, wv, ins):
        d, msg = hazard_need(wv.hist, ins)
        if d > 0: self.err(wv, ins, "hazard: " + msg)
    def pendcheck(self, wv, ins):
        if wv.pend:
            bad = (ins.rd | ins.wr) & wv.pend.keys()
            if bad:
                r = min(bad)
                self.err(wv, ins, f"register {'v' if r < 256 else 'a'}{r % 256} has a load in flight: {wv.pend[r]}")
    def lds_read(self, wv, ins, addrs, nbytes):
        if addrs.size and (addrs.max() + nbytes > self.lds_bytes):
            self.err(wv, ins, f"LDS read out of range: {addrs.max()}"); return np.zeros(0, np.int64)
        g = np.unique((addrs[:, None] + np.arange(0, nbytes, 8)[None, :]).ravel() // 8)
        if self.check:
            if self.wr_pend[g].any(): self.err(wv, ins, f"LDS read of bytes with a write in flight (addr {g[self.wr_pend[g]][0]*8})")
            other = (self.wr_wave[g] != wv.wid) & (self.wr_wave[g] >= 0) & (self.wr_epoch[g] >= self.epoch)
            if other.any(): self.err(wv, ins, f"LDS read of bytes written by another wave in this barrier epoch (addr {g[other][0]*8})")
            self.rd_pend[wv.wid][g] += 1
        return g
    def lds_write(self, wv, ins, addrs, nbytes, dma):
        if addrs.size and (addrs.max() + nbytes > self.lds_bytes):
            self.err(wv, ins, f"LDS write out of range: {addrs.max()}"); return np.zeros(0, np.int64)
        g = np.unique((addrs[:, None] + np.arange(0, nbytes, 8 if nbytes >= 8 else 4)[None, :]).ravel() // 8)
        if self.check:
            for u in range(len(self.waves)):
                if u == wv.wid:
                    if dma and self.rd_pend[u][g].any(): self.err(wv, ins, f"LDS DMA over bytes this wave still reads (addr {g[self.rd_pend[u][g] > 0][0]*8})")
                    continue
                if self.rd_pend[u][g].any(): self.err(wv, ins, f"LDS write over bytes wave {u} has unretired reads of")
                elif (self.rd_epoch[u][g] >= self.epoch).any(): self.err(wv, ins, f"LDS write over bytes wave {u} read in this epoch (addr {g[self.rd_epoch[u][g] >= self.epoch][0]*8})")
            if (self.wr_pend[g]).any(): self.err(wv, ins, "LDS write over bytes with a write in flight")
            oth = (self.wr_wave[g] != wv.wid) & (self.wr_wave[g] >= 0) & (self.wr_epoch[g] >= self.epoch)
            if oth.any(): self.err(wv, ins, "LDS write over bytes another wave wrote in this epoch")
            self.wr_wave[g] = wv.wid; self.wr_pend[g] = True
        return g
    def retire(self, wv, q, n):
        while len(q) > n:
            kind, regs, g = q.popleft()
            for r in regs: wv.pend.pop(r, None)
            if self.check and g is not None and len(g):
                if kind == "r":
                    self.rd_pend[wv.wid][g] -= 1; self.rd_epoch[wv.wid][g] = self.epoch
                elif kind == "w":
                    self.wr_pend[g] = False; self.wr_epoch[g] = self.epoch
    def buf(self, wv, ins, srd, voff, soff, nbytes):
        base = wv.S[srd[1]] | ((wv.S[srd[1] + 1] & 0xFFFF) << 32)
        nrec = wv.S[srd[1] + 2]
        if wv.S[srd[1] + 3] != 0x20000: self.err(wv, ins, "bad SRD word3")
        imm = int(ins.mods.get("offset", 0), 0) if isinstance(ins.mods.get("offset", 0), str) else 0
        off = voff.astype(np.int64) + soff + imm
        rb, arr, name = self.mem.find(base)
        inr = (off + nbytes <= nrec) & wv.execm
        ab = base - rb + off
        bad = inr & ((ab < 0) | (ab + nbytes > arr.nbytes))
        if bad.any():
            self.err(wv, ins, f"access beyond real buffer {name}: offset {ab[bad][0]}"); inr = inr & ~bad
        if nbytes >= 4 and (ab[inr] % 4).any(): self.err(wv, ins, "misaligned buffer access")
        return arr, ab, inr
    def run(self, maxsteps=10**8):
        while True:
            live = [w for w in self.waves if not w.done]
            if not live: break
            for wv in live: self.run_wave(wv)
            self.epoch += 1
        return self.errors
    def run_wave(self, wv):
        prog = self.prog
        while True:
            ins = prog[wv.pc]
            wv.pc += 1
            wv.count += 1
            if self.check:
                self.hazards(wv, ins); self.pendcheck(wv, ins)
            r = self.step(wv, ins)
            w = 1
            if ins.mn == "s_nop": w = ins.ops[0][1] + 1
            wv.hist.append((ins, w))
            if r == "barrier": return
            if r == "end":
                wv.done = True; return
    def step(self, wv, ins):
        mn = ins.mn; o = ins.ops; k = ins.kind
        if k == "mfma": return self.mfma(wv, ins)
        if k == "valu": return self.valu(wv, ins)
        if k == "salu": return self.salu(wv, ins)
        if k == "ds": return self.ds(wv, ins)
        if k == "vmem": return self.vmem(wv, ins)
    def mfma(self, wv, ins):
        o = ins.ops
        if not wv.execm.all(): self.err(wv, ins, "MFMA with partial exec")
        wv.nmfma += 1
        def frag(op):
            b = op[1] + (256 if op[0] == "a" else 0)
            r = wv.V[b:b + 4]
            lo = (r << 16).view(F32); hi = (r & 0xFFFF0000).view(F32)
            x = np.empty((8, 64), F32); x[0::2] = lo; x[1::2] = hi
            return x
        if "32x32x16" in ins.mn:
            A = frag(o[1]); B = frag(o[2])
            Am = np.concatenate([A[:, :32].T, A[:, 32:].T], axis=1)
            Bm = np.concatenate([B[:, :32], B[:, 32:]], axis=0)
            D = Am.astype(np.float64) @ Bm.astype(np.float64)
            cb = o[3][1] + (256 if o[3][0] == "a" else 0)
            if o[3][0] == "i": C = np.zeros((16, 64), F32)
            else: C = wv.V[cb:cb + 16].view(F32)
            out = np.empty((16, 64), F32)
            for j in range(16):
                r0 = 8 * (j >> 2) + (j & 3)
                out[j, :32] = D[r0]; out[j, 32:] = D[r0 + 4]
            out = (out.astype(np.float64) + C).astype(F32)
            db = o[0][1] + (256 if o[0][0] == "a" else 0)
            wv.V[db:db + 16] = out.view(U32)
        else:
            raise EmuError("mfma shape")
    def valu(self, wv, ins):
        mn = ins.mn; o = ins.ops
        rf, rv, W = self.rf, self.rv, self.wv_
        m = ins.mods
        src0 = None
        if any(x in m for x in ("row_shr", "row_ror", "quad_perm", "row_bcast", "row_mirror", "row_half_mirror")):
            raise EmuError("DPP not emulated")
        cl = (lambda x: np.clip(np.nan_to_num(x, nan=0.0), 0, 1).astype(F32)) if "clamp" in m else (lambda x: x)
        if mn == "v_mov_b32" or mn == "v_accvgpr_read_b32" or mn == "v_accvgpr_write_b32" or mn == "v_accvgpr_mov_b32": W(wv, o[0], rv(wv, o[1]).copy())
        elif mn == "v_add_u32": W(wv, o[0], rv(wv, o[1]) + rv(wv, o[2]))
        elif mn == "v_sub_u32": W(wv, o[0], rv(wv, o[1]) - rv(wv, o[2]))
        elif mn == "v_subrev_u32": W(wv, o[0], rv(wv, o[2]) - rv(wv, o[1]))
        elif mn == "v_lshlrev_b32": W(wv, o[0], rv(wv, o[2]) << (rv(wv, o[1]) & 31))
        elif mn == "v_lshrrev_b32": W(wv, o[0], rv(wv, o[2]) >> (rv(wv, o[1]) & 31))
        elif mn == "v_ashrrev_i32": W(wv, o[0], (rv(wv, o[2]).view(np.int32) >> (rv(wv, o[1]) & 31).astype(np.int32)).view(U32))
        elif mn == "v_and_b32": W(wv, o[0], rv(wv, o[1]) & rv(wv, o[2]))
        elif mn == "v_or_b32": W(wv, o[0], rv(wv, o[1]) | rv(wv, o[2]))
        elif mn == "v_xor_b32": W(wv, o[0], rv(wv, o[1]) ^ rv(wv, o[2]))
        elif mn == "v_lshl_add_u32": W(wv, o[0], (rv(wv, o[1]) << (rv(wv, o[2]) & 31)) + rv(wv, o[3]))
        elif mn == "v_lshl_or_b32": W(wv, o[0], (rv(wv, o[1]) << (rv(wv, o[2]) & 31)) | rv(wv, o[3]))
        elif mn == "v_add_lshl_u32": W(wv, o[0], (rv(wv, o[1]) + rv(wv, o[2])) << (rv(wv, o[3]) & 31))
        elif mn == "v_add3_u32": W(wv, o[0], rv(wv, o[1]) + rv(wv, o[2]) + rv(wv, o[3]))
        elif mn == "v_and_or_b32": W(wv, o[0], (rv(wv, o[1]) & rv(wv, o[2])) | rv(wv, o[3]))
        elif mn == "v_bfe_u32": W(wv, o[0], (rv(wv, o[1]) >> (rv(wv, o[2]) & 31)) & ((U32(1) << (rv(wv, o[3]) & 31)) - U32(1)))
        elif mn in ("v_mul_u32_u24",): W(wv, o[0], (rv(wv, o[1]) & 0xFFFFFF) * (rv(wv, o[2]) & 0xFFFFFF))
        elif mn == "v_mad_u32_u24": W(wv, o[0], (rv(wv, o[1]) & 0xFFFFFF) * (rv(wv, o[2]) & 0xFFFFFF) + rv(wv, o[3]))
        elif mn == "v_mul_lo_u32": W(wv, o[0], rv(wv, o[1]) * rv(wv, o[2]))
        elif mn == "v_add_f32": W(wv, o[0], cl(rf(wv, o[1]) + rf(wv, o[2])))
        elif mn == "v_sub_f32": W(wv, o[0], cl(rf(wv, o[1]) - rf(wv, o[2])))
        elif mn == "v_subrev_f32": W(wv, o[0], cl(rf(wv, o[2]) - rf(wv, o[1])))
        elif mn == "v_mul_f32": W(wv, o[0], cl(rf(wv, o[1]) * rf(wv, o[2])))
        elif mn == "v_fma_f32": W(wv, o[0], cl((rf(wv, o[1]).astype(np.float64) * rf(wv, o[2]) + rf(wv, o[3])).astype(F32)))
        elif mn == "v_fmac_f32": W(wv, o[0], (rf(wv, o[1]).astype(np.float64) * rf(wv, o[2]) + rf(wv, o[0])).astype(F32))
        elif mn == "v_max_f32": W(wv, o[0], np.fmax(rf(wv, o[1]), rf(wv, o[2])))
        elif mn == "v_min_f32": W(wv, o[0], np.fmin(rf(wv, o[1]), rf(wv, o[2])))
        elif mn == "v_max3_f32": W(wv, o[0], np.fmax(np.fmax(rf(wv, o[1]), rf(wv, o[2])), rf(wv, o[3])))
        elif mn == "v_exp_f32": W(wv, o[0], np.exp2(rf(wv, o[1]).astype(np.float64)).astype(F32))
        elif mn == "v_log_f32": W(wv, o[0], np.log2(rf(wv, o[1]).astype(np.float64)).astype(F32))
        elif mn == "v_rcp_f32": W(wv, o[0], (1.0 / rf(wv, o[1]).astype(np.float64)).astype(F32))
        elif mn == "v_rsq_f32": W(wv, o[0], (1.0 / np.sqrt(rf(wv, o[1]).astype(np.float64))).astype(F32))
        elif mn == "v_sqrt_f32": W(wv, o[0], np.sqrt(rf(wv, o[1]).astype(np.float64)).astype(F32))
        elif mn == "v_cvt_f32_u32": W(wv, o[0], rv(wv, o[1]).astype(F32))
        elif mn == "v_cvt_f32_i32": W(wv, o[0], rv(wv, o[1]).view(np.int32).astype(F32))
        elif mn == "v_cvt_pk_bf16_f32":
            W(wv, o[0], f32_to_bf16(rf(wv, o[1]).copy()) | (f32_to_bf16(rf(wv, o[2]).copy()) << 16))
        elif mn in ("v_pk_mul_f32", "v_pk_add_f32", "v_pk_fma_f32"):
            res = []
            opsel_hi = m.get("op_sel_hi"); opsel = m.get("op_sel")
            def sel(idx, half):
                op = o[idx + 1]
                s = m.get("op_sel_hi" if half else "op_sel")
                bit = half
                if s: bit = int(s.strip("[]").split(",")[idx])
                if op[0] == "s" and op[2] == 1: return rf(wv, op)
                if op[0] == "i": return rf(wv, op)
                return rf(wv, op, bit)
            for half in (0, 1):
                a = rf(wv, o[1], half) if o[1][2] == 2 else rf(wv, o[1])
                b = rf(wv, o[2], half) if o[2][2] == 2 else rf(wv, o[2])
                if mn == "v_pk_mul_f32": res.append(a * b)
                elif mn == "v_pk_add_f32": res.append(a + b)
                else:
                    c = rf(wv, o[3], half) if o[3][2] == 2 else rf(wv, o[3])
                    res.append((a.astype(np.float64) * b + c).astype(F32))
            W(wv, o[0], res[0].copy(), 0); W(wv, o[0], res[1].copy(), 1)
        elif mn.startswith("v_cmp_"):
            _, _, cmp, ty = mn.split("_")
            if ty == "f32": a, b = rf(wv, o[1]), rf(wv, o[2])
            elif ty == "i32": a, b = rv(wv, o[1]).view(np.int32), rv(wv, o[2]).view(np.int32)
            else: a, b = rv(wv, o[1]), rv(wv, o[2])
            res = {"lt": a < b, "le": a <= b, "gt": a > b, "ge": a >= b, "eq": a == b, "ne": a != b,
                   "neq": ~(a == b), "nle": ~(a <= b), "nlt": ~(a < b), "ngt": ~(a > b), "nge": ~(a >= b)}[cmp] & wv.execm
            if self.force_vcc and self.force_vcc(wv, ins): res = res | wv.execm
            self.ws64(wv, o[0], self.mask_to_int(res))
        elif mn == "v_cndmask_b32":
            mk = self.int_to_mask(self.rs64(wv, o[3]) if len(o) > 3 else wv.S[106] | (wv.S[107] << 32))
            W(wv, o[0], np.where(mk, rv(wv, o[2]), rv(wv, o[1])))
        elif mn == "v_readfirstlane_b32":
            l = int(np.argmax(wv.execm)) if wv.execm.any() else 0
            wv.S[o[0][1]] = int(rv(wv, o[1])[l])
        elif mn == "v_readlane_b32": wv.S[o[0][1]] = int(rv(wv, o[1])[self.rs(wv, o[2]) & 63])
        elif mn == "v_permlane32_swap_b32":
            a = rv(wv, o[0]).copy(); b = rv(wv, o[1]).copy()
            na = a.copy(); nb = b.copy()
            na[32:] = b[:32]; nb[:32] = a[32:]
            W(wv, o[0], na); W(wv, o[1], nb)
        elif mn == "v_mbcnt_lo_u32_b32":
            x = self.rs(wv, o[1]); W(wv, o[0], np.array([bin(x & ((1 << min(i, 32)) - 1)).count("1") for i in range(64)], U32) + rv(wv, o[2]))
        elif mn == "v_mbcnt_hi_u32_b32":
            x = self.rs(wv, o[1]); W(wv, o[0], np.array([bin(x & ((1 << max(i - 32, 0)) - 1)).count("1") for i in range(64)], U32) + rv(wv, o[2]))
        else:
            raise EmuError("valu not emulated: " + ins.text)
    def salu(self, wv, ins):
        mn = ins.mn; o = ins.ops; rs = self.rs; M = 0xFFFFFFFF
        sx = lambda v: v - (1 << 32) if v & 0x80000000 else v
        if mn == "s_waitcnt":
            if "vmcnt" in ins.mods: self.retire(wv, wv.vm, ins.mods["vmcnt"])
            if "lgkmcnt" in ins.mods: self.retire(wv, wv.lgkm, ins.mods["lgkmcnt"])
        elif mn == "s_barrier": return "barrier"
        elif mn == "s_endpgm":
            self.retire(wv, wv.vm, 0); self.retire(wv, wv.lgkm, 0)
            return "end"
        elif mn in ("s_nop", "s_setprio", "s_sleep"): pass
        elif mn == "s_mov_b32": self.ws(wv, o[0], rs(wv, o[1]))
        elif mn == "s_mov_b64": self.ws64(wv, o[0], self.rs64(wv, o[1]))
        elif mn == "s_movk_i32": self.ws(wv, o[0], sx(o[1][1] << 16 & M) >> 16 if o[1][1] < 0x10000 else o[1][1])
        elif mn == "s_add_u32": r = rs(wv, o[1]) + rs(wv, o[2]); self.ws(wv, o[0], r); wv.scc = int(r > M)
        elif mn == "s_addc_u32": r = rs(wv, o[1]) + rs(wv, o[2]) + wv.scc; self.ws(wv, o[0], r); wv.scc = int(r > M)
        elif mn == "s_sub_u32": r = rs(wv, o[1]) - rs(wv, o[2]); self.ws(wv, o[0], r); wv.scc = int(r < 0)
        elif mn == "s_subb_u32": r = rs(wv, o[1]) - rs(wv, o[2]) - wv.scc; self.ws(wv, o[0], r); wv.scc = int(r < 0)
        elif mn == "s_add_i32": r = sx(rs(wv, o[1])) + sx(rs(wv, o[2])); self.ws(wv, o[0], r); wv.scc = int(not -2**31 <= r < 2**31)
        elif mn == "s_sub_i32": r = sx(rs(wv, o[1])) - sx(rs(wv, o[2])); self.ws(wv, o[0], r); wv.scc = int(not -2**31 <= r < 2**31)
        elif mn == "s_mul_i32": self.ws(wv, o[0], sx(rs(wv, o[1])) * sx(rs(wv, o[2])))
        elif mn == "s_lshl_b32": r = (rs(wv, o[1]) << (rs(wv, o[2]) & 31)) & M; self.ws(wv, o[0], r); wv.scc = int(r != 0)
        elif mn == "s_lshr_b32": r = rs(wv, o[1]) >> (rs(wv, o[2]) & 31); self.ws(wv, o[0], r); wv.scc = int(r != 0)
        elif mn == "s_and_b32": r = rs(wv, o[1]) & rs(wv, o[2]); self.ws(wv, o[0], r); wv.scc = int(r != 0)
        elif mn == "s_or_b32": r = rs(wv, o[1]) | rs(wv, o[2]); self.ws(wv, o[0], r); wv.scc = int(r != 0)
        elif mn == "s_xor_b32": r = rs(wv, o[1]) ^ rs(wv, o[2]); self.ws(wv, o[0], r); wv.scc = int(r != 0)
        elif mn == "s_bfe_u32":
            c = rs(wv, o[2]); r = (rs(wv, o[1]) >> (c & 31)) & ((1 << ((c >> 16) & 0x7F)) - 1); self.ws(wv, o[0], r); wv.scc = int(r != 0)
        elif mn == "s_min_u32": a, b = rs(wv, o[1]), rs(wv, o[2]); self.ws(wv, o[0], min(a, b)); wv.scc = int(a < b)
        elif mn == "s_max_u32": a, b = rs(wv, o[1]), rs(wv, o[2]); self.ws(wv, o[0], max(a, b)); wv.scc = int(a > b)
        elif mn == "s_cselect_b32": self.ws(wv, o[0], rs(wv, o[1]) if wv.scc else rs(wv, o[2]))
        elif mn == "s_and_b64": r = self.rs64(wv, o[1]) & self.rs64(wv, o[2]); self.ws64(wv, o[0], r); wv.scc = int(r != 0)
        elif mn == "s_or_b64": r = self.rs64(wv, o[1]) | self.rs64(wv, o[2]); self.ws64(wv, o[0], r); wv.scc = int(r != 0)
        elif mn == "s_and_saveexec_b64":
            e = wv.S[126] | (wv.S[127] << 32); s = self.rs64(wv, o[1])
            self.ws64(wv, o[0], e); self.ws64(wv, ("s", 126, 2), e & s); wv.scc = int((e & s) != 0)
        elif mn.startswith("s_cmp_"):
            _, _, c, ty = mn.split("_")
            a, b = rs(wv, o[0]), rs(wv, o[1])
            if ty == "i32": a, b = sx(a), sx(b)
            wv.scc = int({"eq": a == b, "lg": a != b, "lt": a < b, "le": a <= b, "gt": a > b, "ge": a >= b}[c])
        elif mn == "s_bitcmp1_b32": wv.scc = (rs(wv, o[0]) >> (rs(wv, o[1]) & 31)) & 1
        elif mn == "s_bitcmp0_b32": wv.scc = 1 - ((rs(wv, o[0]) >> (rs(wv, o[1]) & 31)) & 1)
        elif mn == "s_branch": wv.pc = self.labels[o[0][1]]
        elif mn == "s_cbranch_scc1":
            if wv.scc: wv.pc = self.labels[o[0][1]]
        elif mn == "s_cbranch_scc0":
            if not wv.scc: wv.pc = self.labels[o[0][1]]
        elif mn == "s_cbranch_vccnz":
            if (wv.S[106] | wv.S[107]) != 0:
                wv.pc = self.labels[o[0][1]]; self.taken[o[0][1]] = self.taken.get(o[0][1], 0) + 1
        elif mn == "s_cbranch_vccz":
            if (wv.S[106] | wv.S[107]) == 0: wv.pc = self.labels[o[0][1]]
        elif mn == "s_cbranch_execz":
            if (wv.S[126] | wv.S[127]) == 0: wv.pc = self.labels[o[0][1]]
        elif mn == "s_cbranch_execnz":
            if (wv.S[126] | wv.S[127]) != 0: wv.pc = self.labels[o[0][1]]
        elif mn.startswith("s_load_dword"):
            n = {"s_load_dword": 1, "s_load_dwordx2": 2, "s_load_dwordx4": 4, "s_load_dwordx8": 8, "s_load_dwordx16": 16}[mn]
            addr = self.rs64(wv, o[1]) + rs(wv, o[2])
            rb, arr, name = self.mem.find(addr)
            d = arr[addr - rb: addr - rb + 4 * n].view(U32)
            for i in range(n): wv.S[o[0][1] + i] = int(d[i])
            wv.lgkm.append(("s", [], None))
            if any(x[0] != "s" for x in wv.lgkm): pass
        else:
            raise EmuError("salu not emulated: " + ins.text)
    def ds(self, wv, ins):
        mn = ins.mn; o = ins.ops
        off = int(ins.mods.get("offset", "0"), 0)
        act = wv.execm
        def setpend(op, n):
            b = op[1] + (256 if op[0] == "a" else 0)
            regs = list(range(b, b + n))
            for r in regs: wv.pend[r] = f"line {ins.line}"
            return regs
        if mn in ("ds_read_b128", "ds_read_b64", "ds_read_b32"):
            n = {"ds_read_b128": 4, "ds_read_b64": 2, "ds_read_b32": 1}[mn]
            a = self.rv(wv, o[1]).astype(np.int64) + off
            if (a[act] % (4 * n if n > 1 else 4)).any(): self.err(wv, ins, "misaligned ds read")
            g = self.lds_read(wv, ins, a[act], 4 * n)
            a = np.where(act, a, 0); a = np.clip(a, 0, self.lds_bytes - 4 * n)
            data = self.lds[a[:, None] + np.arange(4 * n)[None, :]].view(U32).reshape(64, n)
            for i in range(n): self.wv_(wv, o[0], data[:, i].copy(), i)
            wv.lgkm.append(("r", setpend(o[0], n), g))
        elif mn == "ds_read_b64_tr_b16":
            if not act.all(): self.err(wv, ins, "tr read with partial exec")
            a = self.rv(wv, o[1]).astype(np.int64) + off
            if (a % 8).any(): self.err(wv, ins, "misaligned tr read")
            g = self.lds_read(wv, ins, a, 8)
            a = np.clip(a, 0, self.lds_bytes - 8)
            raw = self.lds[a[:, None] + np.arange(8)[None, :]].view(np.uint16).reshape(64, 4)
            out = np.empty((64, 4), np.uint16)
            for l in range(64):
                gbase = l & ~15; i = l & 15
                for r in range(4): out[l, r] = raw[gbase + 4 * r + (i >> 2), i & 3]
            d = out.view(U32).reshape(64, 2)
            self.wv_(wv, o[0], d[:, 0].copy(), 0); self.wv_(wv, o[0], d[:, 1].copy(), 1)
            wv.lgkm.append(("r", setpend(o[0], 2), g))
        elif mn in ("ds_write_b128", "ds_write_b64", "ds_write_b32"):
            n = {"ds_write_b128": 4, "ds_write_b64": 2, "ds_write_b32": 1}[mn]
            a = self.rv(wv, o[0]).astype(np.int64) + off
            g = self.lds_write(wv, ins, a[act], 4 * n, False)
            data = np.stack([self.rv(wv, o[1], i) for i in range(n)], 1).view(np.uint8).reshape(64, 4 * n)
            idx = a[act][:, None] + np.arange(4 * n)[None, :]
            if idx.size and idx.max() < self.lds_bytes: self.lds[idx] = data[act]
            wv.lgkm.append(("w", [], g))
        elif mn == "ds_swizzle_b32":
            assert off < 0x8000
            xm, om, am = (off >> 10) & 31, (off >> 5) & 31, off & 31
            src = (LANES & 32) | ((((LANES & 31) & am) | om) ^ xm)
            self.wv_(wv, o[0], self.rv(wv, o[1])[src].copy())
            wv.lgkm.append(("x", setpend(o[0], 1), None))
        else:
            raise EmuError("ds not emulated: " + ins.text)
    def vmem(self, wv, ins):
        mn = ins.mn; o = ins.ops; m = ins.mods
        if mn in ("buffer_wbl2", "buffer_inv"):
            wv.vm.append(("x", [], None)); return
        n = {"dword": 1, "dwordx2": 2, "dwordx4": 4, "ushort": 0}.get(mn.split("_")[-1])
        if mn.startswith("buffer_load"):
            if "lds" in m:
                voff = self.rv(wv, o[0]) if "offen" in m else np.zeros(64, U32)
                arr, ab, inr = self.buf(wv, ins, o[1], voff, self.rs(wv, o[2]), 4 * n)
                imm = int(m.get("offset", "0"), 0)
                la = (wv.S[124] & 0x3FFFC) + imm + np.arange(64, dtype=np.int64) * 4 * n
                if not wv.execm.all(): self.err(wv, ins, "LDS DMA with partial exec (untested)")
                g = self.lds_write(wv, ins, la, 4 * n, True)
                abc = np.where(inr, ab, 0)
                data = arr[abc[:, None] + np.arange(4 * n)[None, :]]
                data[~inr] = 0
                if la.max() + 4 * n <= self.lds_bytes: self.lds[la[:, None] + np.arange(4 * n)[None, :]] = data
                wv.vm.append(("w", [], g))
            else:
                voff = self.rv(wv, o[1]) if "offen" in m else np.zeros(64, U32)
                nb = 4 * n if n else 2
                arr, ab, inr = self.buf(wv, ins, o[2], voff, self.rs(wv, o[3]), nb)
                abc = np.where(inr, ab, 0)
                data = arr[abc[:, None] + np.arange(nb)[None, :]].copy()
                data[~inr] = 0
                if n:
                    d = data.view(U32).reshape(64, n)
                    for i in range(n): self.wv_(wv, o[0], d[:, i].copy(), i)
                else:
                    self.wv_(wv, o[0], data.view(np.uint16).reshape(64).astype(U32))
                b = o[0][1] + (256 if o[0][0] == "a" else 0)
                regs = list(range(b, b + max(n, 1)))
                for r in regs: wv.pend[r] = f"line {ins.line}"
                wv.vm.append(("l", regs, None))
        elif mn.startswith("buffer_store"):
            voff = self.rv(wv, o[1]) if "offen" in m else np.zeros(64, U32)
            arr, ab, inr = self.buf(wv, ins, o[2], voff, self.rs(wv, o[3]), 4 * n)
            data = np.stack([self.rv(wv, o[0], i) for i in range(n)], 1).view(np.uint8).reshape(64, 4 * n)
            idx = ab[inr][:, None] + np.arange(4 * n)[None, :]
            arr[idx] = data[inr]
            wv.vm.append(("st", [], None))
        else:
            raise EmuError("vmem not emulated: " + ins.text)

def run_kernel(prog, labels, mem, kernarg_addr, entry, wgids, nthreads, lds, check=True, force_vcc=None, verbose=False):
    errs = []
    for g in wgids:
        wg = WG(prog, labels, mem, kernarg_addr, g, nthreads, lds, entry, check, force_vcc)
        e = wg.run()
        errs += e
        if verbose: print(f"wg {g}: instrs/wave {[w.count for w in wg.waves]} mfma {[w.nmfma for w in wg.waves]} epochs {wg.epoch} errors {len(e)} taken {wg.taken}")
    return errs
```

```python
from asmlib import *
WS_LNX = 0x0
WS_KV  = 0x200000
WS_CTX = 0x2200000
WS_H   = 0x3200000
WS_ST  = 0x3400000
WS_CSP = 0x3440000
WS_H1  = 0x3500000
QSCALE = 1.4426950408889634 / (128 ** 0.5)
import struct
def fhex(x): return "0x%08x" % struct.unpack("<I", struct.pack("<f", x))[0]

KA = dict(x=0, ckv=8, wq=16, wuk=24, wuv=32, wo=40, bx=48, w1=56, b1=64, w2=72, b2=80, out=88, dbg=96, ws=104)

def srd(dst, ptr, size, add=None):
    o = []
    if add is None:
        o += [f"s_mov_b32 {s(dst)}, {s(ptr)}", f"s_mov_b32 {s(dst+1)}, {s(ptr+1)}"]
    else:
        o += [f"s_add_u32 {s(dst)}, {s(ptr)}, {add}", f"s_addc_u32 {s(dst+1)}, {s(ptr+1)}, 0"]
    o += [f"s_mov_b32 {s(dst+2)}, {size}", f"s_mov_b32 {s(dst+3)}, 0x20000"]
    return o

def kernel_text(name, blocks, order, nvgpr, accum, nsgpr=96):
    t = [f".globl {name}", ".p2align 8", f".type {name},@function", f"{name}:"]
    t += emit_blocks(order, blocks)
    return t

def descriptor(name, nvgpr, accum, nsgpr=100):
    return [f".amdhsa_kernel {name}",
            f"  .amdhsa_next_free_vgpr {nvgpr}",
            f"  .amdhsa_next_free_sgpr {nsgpr}",
            f"  .amdhsa_accum_offset {accum}",
            "  .amdhsa_group_segment_fixed_size 0",
            "  .amdhsa_kernarg_size 112",
            "  .amdhsa_user_sgpr_count 2",
            "  .amdhsa_user_sgpr_kernarg_segment_ptr 1",
            "  .amdhsa_system_sgpr_workgroup_id_x 1",
            "  .amdhsa_float_denorm_mode_32 3",
            ".end_amdhsa_kernel"]

def unpack_bf16(dst_lo, dst_hi, src):
    return [f"v_lshlrev_b32 {v(dst_lo)}, 16, {v(src)}", f"v_and_b32 {v(dst_hi)}, 0xffff0000, {v(src)}"]

def swz_xor(x): return (x << 10) | 0x1F

import os
STAMPS = os.environ.get("STAMPS", "0") == "1"
WS_STAMP = 0x3F00000
def stamp(k):
    if not STAMPS: return []
    o = [f"s_memtime s[{80+2*k}:{81+2*k}]"]
    if k == 0: o += ["s_memrealtime s[76:77]"]
    return o
def stamp_store(n, region=0, wsptr_ka=104):
    if not STAMPS: return []
    o = ["s_waitcnt vmcnt(0) lgkmcnt(0)", f"s_memtime s[{80+2*n}:{81+2*n}]", "s_memrealtime s[78:79]",
         f"s_load_dwordx2 s[64:65], s[0:1], {wsptr_ka}", "s_waitcnt lgkmcnt(0)",
         f"s_add_u32 s68, s64, {WS_STAMP + region * 0x10000}", "s_addc_u32 s69, s65, 0", "s_mov_b32 s70, 0x100000", "s_mov_b32 s71, 0x20000",
         "s_mov_b64 exec, -1",
         "v_lshrrev_b32 v241, 6, v0", "v_lshlrev_b32 v241, 6, v241", "s_lshl_b32 s72, s2, 8", "v_add_u32 v241, s72, v241"]
    vals = ["s76", "s78"] + [f"s{80+2*k}" for k in range(n + 1)]
    for i, sv in enumerate(vals):
        o += [f"v_mov_b32 v240, {sv}", f"buffer_store_dword v240, v241, s[68:71], 0 offen offset:{4*i}"]
    o += ["s_waitcnt vmcnt(0)"]
    return o
```

```python
import sys, importlib
from gen_common import *
HEADER = open("sequential_preLN__compressed_kv_cla__dense_activation_squared_relu__prompt.s.ref").read().split("; Override launch geometry")[0]

def generate(kernels):
    out = [HEADER.rstrip()]
    texts = []; descs = []
    for mod, grid in kernels:
        t, d = mod.build()
        out.append(f"; @launch kernel={mod.NAME} grid=({grid},1,1) block=(256,1,1) lds={mod.LDS}")
        texts += t; descs.append(d)
    out += ['.amdgcn_target "amdgcn-amd-amdhsa--gfx950"', ".text"]
    out += texts
    out += ['.section .rodata,"a"']
    for d in descs: out += [".p2align 6"] + d
    return "\n".join(out) + "\n"

if __name__ == "__main__":
    names = sys.argv[2:]
    mods = []
    for n in names:
        m = importlib.import_module("gen_" + n)
        mods.append((m, getattr(m, "GRID", 256)))
    open(sys.argv[1], "w").write(generate(mods))
    print("wrote", sys.argv[1])
```

```python
import re
from emu import decode as _decode
def decode(t, n):
    d = _decode(t.split(';')[0].strip(), n)
    return d

def v(i, n=1): return f"v{i}" if n == 1 else f"v[{i}:{i+n-1}]"
def a(i, n=1): return f"a{i}" if n == 1 else f"a[{i}:{i+n-1}]"
def s(i, n=1): return f"s{i}" if n == 1 else f"s[{i}:{i+n-1}]"
def R(r, n=1):
    return (v if r[0] == "v" else a)(r[1], n)
def off(r, k): return (r[0], r[1] + k)

def mfma(d, A, B, c=None):
    cs = R(d, 16) if c is None else (c if isinstance(c, str) else R(c, 16))
    return f"v_mfma_f32_32x32x16_bf16 {R(d,16)}, {R(A,4)}, {R(B,4)}, {cs}"

def interleave(mf, gaps):
    out = []
    for m, g in zip(mf, gaps):
        out.append(m); out.extend(g)
    return out

def spread(gaps, items, g0, g1):
    n = len(items); span = g1 - g0
    for i, it in enumerate(items):
        g = g0 + (i * span) // n
        if isinstance(it, str): gaps[g].append(it)
        else: gaps[g].extend(it)

class Block:
    def __init__(self, name, ins, succ=()):
        self.name = name; self.ins = list(ins); self.succ = list(succ)

def _is_lgkm(d): return d.kind == "ds" or d.mn.startswith("s_load")
def _is_vm(d): return d.kind == "vmem"

def insert_waits(blocks, entry, entry_state=None, do_vm=True, lslack=0):
    dec = {n: [decode(t, 0) if not t.endswith(":") else None for t in b.ins] for n, b in blocks.items()}
    waits = {n: {} for n in blocks}
    def run(name, st):
        lq, vq = list(st[0]), list(st[1])
        for pos, d in enumerate(dec[name]):
            if d is None: continue
            touched = d.rd | d.wr
            wl = wvm = None
            if touched:
                for i in range(len(lq) - 1, -1, -1):
                    if lq[i] & touched: wl = len(lq) - 1 - i; break
                if do_vm:
                    for i in range(len(vq) - 1, -1, -1):
                        if vq[i] & touched: wvm = len(vq) - 1 - i; break
            cur = waits[name].get(pos, [None, None])
            new = list(cur)
            if wl is not None:
                wl = max(0, min(wl, 15) - (lslack if cur[0] is None else 0)); new[0] = wl if cur[0] is None else min(cur[0], wl)
            if wvm is not None:
                wvm = min(wvm, 63); new[1] = wvm if cur[1] is None else min(cur[1], wvm)
            if new != cur: waits[name][pos] = new; changed[0] = True
            if new[0] is not None: lq = lq[len(lq) - new[0]:] if new[0] < len(lq) else lq
            if new[0] == 0: lq = []
            if new[1] is not None: vq = vq[len(vq) - new[1]:] if new[1] < len(vq) else vq
            if new[1] == 0: vq = []
            if d.mn == "s_waitcnt" and blocks[name].ins[pos].endswith(";nocount"):
                pass
            elif d.mn == "s_waitcnt":
                if "lgkmcnt" in d.mods:
                    n = d.mods["lgkmcnt"]; lq = lq[len(lq) - n:] if 0 < n < len(lq) else ([] if n == 0 else lq)
                if "vmcnt" in d.mods:
                    n = d.mods["vmcnt"]; vq = vq[len(vq) - n:] if 0 < n < len(vq) else ([] if n == 0 else vq)
            elif _is_lgkm(d):
                lq.append(frozenset(d.wr))
                if d.mn.startswith("s_load") and d.mn != "s_load_dword": lq.append(frozenset())
            elif _is_vm(d) and blocks[name].ins[pos].endswith(";nocount"):
                pass
            elif _is_vm(d):
                isld = d.mn.startswith("buffer_load") and "lds" not in d.mods
                vq.append(frozenset(d.wr) if isld else frozenset())
        return (tuple(lq[-64:]), tuple(vq[-128:]))
    for it in range(12):
        changed = [False]
        seen = set()
        work = [(entry, entry_state or ((), ()))]
        steps = 0
        while work:
            name, st = work.pop()
            key = (name, st)
            if key in seen: continue
            seen.add(key); steps += 1
            if steps > 4000: raise RuntimeError("insert_waits: state explosion")
            out = run(name, st)
            for sname in blocks[name].succ: work.append((sname, out))
        if not changed[0]: break
    for n, b in blocks.items():
        new = []
        for pos, t in enumerate(b.ins):
            w = waits[n].get(pos)
            if w and (w[0] is not None or w[1] is not None):
                parts = []
                if w[1] is not None: parts.append(f"vmcnt({w[1]})")
                if w[0] is not None: parts.append(f"lgkmcnt({w[0]})")
                new.append("s_waitcnt " + " ".join(parts))
            new.append(t)
        b.ins = new
    return blocks

def emit_blocks(order, blocks):
    out = []
    for n in order:
        out.append(f"{n}:")
        for t in blocks[n].ins:
            out.append(t if t.endswith(":") else "    " + t)
    return out

from emu import hazard_need
def pad_hazards(blocks, entry):
    def weight(d): return d.ops[0][1] + 1 if d.mn == "s_nop" else 1
    total = 0
    for it in range(20):
        inserted = 0
        dec = {n: [decode(t, 0) if not t.endswith(":") else None for t in b.ins] for n, b in blocks.items()}
        seen = set(); work = [(entry, ())]
        need = {}
        while work:
            name, tail = work.pop()
            key = (name, tuple(id(x[0]) for x in tail))
            if key in seen: continue
            seen.add(key)
            hist = list(tail)
            for pos, d in enumerate(dec[name]):
                if d is None: continue
                df, msg = hazard_need(hist, d)
                if df > 0:
                    need[(name, pos)] = max(need.get((name, pos), 0), df)
                hist.append((d, weight(d)))
                if len(hist) > 20: hist = hist[-20:]
            for sname in blocks[name].succ: work.append((sname, tuple(hist[-16:])))
        if not need: break
        for name in blocks:
            ps = sorted([p for (n, p) in need if n == name])
            if not ps: continue
            last = -100; new = []; ins = blocks[name].ins
            todo = {}
            for p in ps:
                if p - last > 14: todo[p] = need[(name, p)]; last = p
            for pos, t in enumerate(ins):
                if pos in todo:
                    new.append(f"s_nop {todo[pos]-1}"); inserted += 1
                new.append(t)
            blocks[name].ins = new
        total += inserted
    return total


def slots(t):
    if t.endswith(":"): return 0
    if t.startswith(("v_exp", "v_rcp", "v_rsq", "v_log", "v_sqrt")): return 2
    if t.startswith("s_nop"): return int(t.split()[1]) + 1
    return 1
def nslots(L): return sum(slots(t) for t in L)

def pace(gaps, stream, g0, g1, cap=6, reserve=None):
    reserve = reserve or {}
    idx = list(range(g0, g1 + 1))
    base = [nslots(gaps[g]) + reserve.get(g, 0) for g in idx]
    n = len(stream); c = [slots(t) for t in stream]
    pre = [0]
    for x in c: pre.append(pre[-1] + x)
    INF = 1e18
    best = [[INF] * (n + 1) for _ in range(len(idx) + 1)]; best[0][0] = 0
    arg = [[0] * (n + 1) for _ in range(len(idx) + 1)]
    for gi in range(len(idx)):
        for a_ in range(n + 1):
            if best[gi][a_] >= INF: continue
            for b_ in range(a_, n + 1):
                load = base[gi] + pre[b_] - pre[a_]
                if load > cap + 6 and b_ > a_: break
                cst = best[gi][a_] + 1000 * max(0, load - cap) ** 2 + load * load
                if cst < best[gi + 1][b_]: best[gi + 1][b_] = cst; arg[gi + 1][b_] = a_
    assert best[len(idx)][n] < INF
    cuts = [n]
    for gi in range(len(idx), 0, -1): cuts.append(arg[gi][cuts[-1]])
    cuts = cuts[::-1]
    for gi, g in enumerate(idx): gaps[g].extend(stream[cuts[gi]:cuts[gi + 1]])

def resolve_vm_waits(lines):
    q = []; out = []; marks = {}
    for t in lines:
        if t.endswith(":"): out.append(t); continue
        txt, _, ann = t.partition(";@")
        txt = txt.rstrip()
        m = re.match(r"s_waitcnt vmcnt\((@[^)]*)\)(.*)", txt)
        if m:
            n = 63
            for tag in m.group(1).split(","):
                tag = tag[1:]
                if tag in marks: n = min(n, len(q) - marks[tag]); continue
                idx = [i for i, x in enumerate(q) if x == tag]
                assert idx, f"no op tagged {tag}"
                n = min(n, len(q) - 1 - idx[-1])
            out.append(f"s_waitcnt vmcnt({n}){m.group(2)}" + (" ;nocount" if ann == "nocount" else "")); continue
        if ann.startswith("mark:"):
            marks[ann[5:]] = len(q); out.append(txt + " ;nocount"); continue
        if txt.startswith("buffer_") and ann != "nocount": q.append(ann or None)
        out.append(txt + (" ;nocount" if ann == "nocount" else ""))
    return out
```

```python
import re, sys
import numpy as np
from collections import deque

np.seterr(all="ignore")
U32 = np.uint32
F32 = np.float32
LANES = np.arange(64, dtype=np.uint32)

class EmuError(Exception):
    pass

def f2u(x):
    return int(np.array([x], dtype=F32).view(U32)[0])

INLINE_F = {"0.5", "-0.5", "1.0", "-1.0", "2.0", "-2.0", "4.0", "-4.0"}

def parse_operand(t):
    t = t.strip()
    neg = ab = False
    if t.startswith("-") and not re.match(r"^-(0x[0-9a-fA-F]+|\d+|\d+\.\d+)$", t):
        neg = True; t = t[1:]
    if t.startswith("|") and t.endswith("|"):
        ab = True; t = t[1:-1]
    m = re.match(r"^([vas])(\d+)$", t)
    if m: return (m.group(1), int(m.group(2)), 1, neg, ab)
    m = re.match(r"^([vas])\[(\d+):(\d+)\]$", t)
    if m: return (m.group(1), int(m.group(2)), int(m.group(3)) - int(m.group(2)) + 1, neg, ab)
    if t == "vcc": return ("s", 106, 2, neg, ab)
    if t == "vcc_lo": return ("s", 106, 1, neg, ab)
    if t == "vcc_hi": return ("s", 107, 1, neg, ab)
    if t == "exec": return ("s", 126, 2, neg, ab)
    if t == "exec_lo": return ("s", 126, 1, neg, ab)
    if t == "exec_hi": return ("s", 127, 1, neg, ab)
    if t == "m0": return ("s", 124, 1, neg, ab)
    if t == "off": return ("off", 0, 0, False, False)
    if re.match(r"^-?\d+\.\d+$", t): return ("i", f2u(float(t)), 1, False, False)
    if re.match(r"^-?(0x[0-9a-fA-F]+|\d+)$", t): return ("i", int(t, 0) & 0xFFFFFFFF, 1, False, False)
    return ("label", t, 0, False, False)

class Ins:
    __slots__ = ("text", "mn", "ops", "mods", "line", "kind", "rd", "wr", "srd", "swr", "passes", "trans", "fn")

TRANS = ("v_exp_f32", "v_log_f32", "v_rcp_f32", "v_rsq_f32", "v_sqrt_f32")

def regs_of(op):
    k, i, n = op[0], op[1], op[2]
    if k == "v": return set(range(i, i + n))
    if k == "a": return set(range(256 + i, 256 + i + n))
    return set()
def sregs_of(op):
    return set(range(op[1], op[1] + op[2])) if op[0] == "s" else set()

def decode(text, lineno):
    ins = Ins(); ins.text = text; ins.line = lineno
    parts = text.split(None, 1)
    mn = parts[0]
    for suf in ("_e32", "_e64"):
        if mn.endswith(suf): mn = mn[:-4]
    ins.mn = mn
    ops = []; mods = {}
    if len(parts) > 1:
        rest = parts[1]
        if mn == "s_getreg_b32": rest = rest.split(",")[0]
        if mn == "s_waitcnt":
            for m in re.finditer(r"(vmcnt|lgkmcnt|expcnt)\((\d+)\)", rest): mods[m.group(1)] = int(m.group(2))
        else:
            toks = [x.strip() for x in rest.split(",")]
            for ti, t in enumerate(toks):
                sub = t.split()
                if not sub: continue
                first = sub[0]
                if ":" in first and not first.startswith(("v[", "s[", "a[", "-v[", "|v")):
                    sub = [None] + sub
                elif first in ("offen", "lds", "sc0", "sc1", "nt", "clamp"):
                    sub = [None] + sub
                else:
                    ops.append(parse_operand(first))
                for md in sub[1:]:
                    if ":" in md:
                        a, b = md.split(":", 1); mods[a] = b
                    else: mods[md] = True
    ins.ops = ops; ins.mods = mods
    ins.trans = mn in TRANS
    ins.passes = 0
    rd = set(); wr = set(); srd = set(); swr = set()
    if mn.startswith("v_mfma"):
        ins.kind = "mfma"; ins.passes = 8 if "32x32" in mn else 4
        wr = regs_of(ops[0]); rd = regs_of(ops[1]) | regs_of(ops[2]) | regs_of(ops[3])
    elif mn.startswith("v_cmp"):
        ins.kind = "valu"; swr = sregs_of(ops[0])
        for o in ops[1:]: rd |= regs_of(o); srd |= sregs_of(o)
    elif mn in ("v_readfirstlane_b32", "v_readlane_b32"):
        ins.kind = "valu"; swr = sregs_of(ops[0]); rd = regs_of(ops[1])
        for o in ops[2:]: srd |= sregs_of(o)
    elif mn == "v_permlane32_swap_b32" or mn == "v_permlane16_swap_b32":
        ins.kind = "valu"; rd = regs_of(ops[0]) | regs_of(ops[1]); wr = set(rd)
    elif mn.startswith("v_"):
        ins.kind = "valu"; wr = regs_of(ops[0])
        for o in ops[1:]: rd |= regs_of(o); srd |= sregs_of(o)
        if mn in ("v_fmac_f32", "v_pk_fmac_f32"): rd |= wr
        if mn == "v_cndmask_b32" and len(ops) == 3: srd |= {106, 107}
    elif mn.startswith("ds_read") or mn.startswith("ds_swizzle") or mn.startswith("ds_bpermute"):
        ins.kind = "ds"; wr = regs_of(ops[0])
        for o in ops[1:]: rd |= regs_of(o)
    elif mn.startswith("ds_write"):
        ins.kind = "ds"
        for o in ops: rd |= regs_of(o)
    elif mn.startswith("buffer_load"):
        ins.kind = "vmem"
        if "lds" in mods:
            rd = regs_of(ops[0]); srd = sregs_of(ops[1]) | sregs_of(ops[2]) | {124}
        else:
            wr = regs_of(ops[0]); rd = regs_of(ops[1]); srd = sregs_of(ops[2]) | sregs_of(ops[3])
    elif mn.startswith("buffer_store") or mn.startswith("buffer_atomic"):
        ins.kind = "vmem"; rd = regs_of(ops[0]) | regs_of(ops[1]); srd = sregs_of(ops[2]) | sregs_of(ops[3])
        if "sc0" in mods and mn.startswith("buffer_atomic"): wr = regs_of(ops[0])
    elif mn in ("buffer_wbl2", "buffer_inv"):
        ins.kind = "vmem"
    elif mn.startswith("s_"):
        ins.kind = "salu"
        nodst = mn.startswith(("s_cmp", "s_cbranch", "s_branch", "s_waitcnt", "s_barrier", "s_nop", "s_endpgm", "s_setprio", "s_sleep", "s_bitcmp"))
        if not nodst:
            swr = sregs_of(ops[0])
            for o in ops[1:]: srd |= sregs_of(o)
            if mn in ("s_addk_i32",): srd |= swr
            if "saveexec" in mn: swr |= {126, 127}; srd |= {126, 127}
        else:
            for o in ops: srd |= sregs_of(o)
    else:
        raise EmuError(f"line {lineno}: unknown instruction {text}")
    ins.rd, ins.wr, ins.srd, ins.swr = rd, wr, srd, swr
    return ins

def parse_program(asm_text):
    prog = []; labels = {}
    for n, raw in enumerate(asm_text.split("\n"), 1):
        line = raw.split(";")[0].strip()
        if not line: continue
        if line.startswith("."):
            if line.startswith(".section"): pass
            continue
        m = re.match(r"^([A-Za-z_][\w.$]*):$", line)
        if m:
            labels[m.group(1)] = len(prog); continue
        prog.append(decode(line, n))
    return prog, labels

def hazard_need(hist, ins):
    dist = 0; worst = 0; msg = ""
    for prev, w in reversed(hist):
        need = 0; why = ""
        if prev.kind == "valu":
            if ins.kind == "mfma" and (prev.wr & ins.rd): need, why = 2, "VALU write -> MFMA read"
            if prev.trans and ins.kind == "valu" and not ins.trans and (prev.wr & ins.rd): need, why = max(need, 1), why or "trans -> VALU"
            if prev.trans and ins.kind == "valu" and ins.trans and (prev.wr & ins.rd): need, why = max(need, 1), why or "trans -> trans (pad anyway)"
            if prev.swr:
                if ins.kind == "valu" and (prev.swr & ins.srd): need, why = max(need, 2), "VALU writes SGPR -> VALU reads"
                if ins.kind == "vmem" and (prev.swr & ins.srd): need, why = max(need, 5), "VALU writes SGPR -> VMEM"
                if ins.kind == "salu" and prev.mn.startswith("v_read") and (prev.swr & ins.srd): need, why = max(need, 1), "readlane SGPR -> SALU (pad)"
            if ins.mn in ("v_readfirstlane_b32", "v_readlane_b32") and (prev.wr & ins.rd): need, why = max(need, 1), "VALU -> readlane"
            if ins.mn.startswith("v_permlane") and (prev.wr & ins.rd): need, why = max(need, 2), "VALU -> permlane"
            if "row_shr" in ins.mods or "row_ror" in ins.mods or "quad_perm" in ins.mods or "row_bcast" in ins.mods or "row_mirror" in ins.mods or "row_half_mirror" in ins.mods:
                if prev.wr & ins.rd: need, why = max(need, 2), "VALU -> DPP"
        elif prev.kind == "mfma":
            p8 = prev.passes == 8
            if ins.kind == "mfma":
                a_b = regs_of(ins.ops[1]) | regs_of(ins.ops[2])
                c = regs_of(ins.ops[3])
                if prev.wr & a_b: need, why = (12 if p8 else 8), "MFMA D -> MFMA A/B"
                elif prev.wr & c:
                    if not (prev.wr == c and prev.passes == ins.passes): need, why = (10 if p8 else 6), "MFMA D -> overlapping C"
                if (prev.wr & ins.wr) and not (prev.wr & c): need, why = max(need, 10 if p8 else 6), "MFMA D -> MFMA D (WAW)"
            else:
                if ins.kind in ("valu", "vmem", "ds") and (prev.wr & (ins.rd | ins.wr)): need, why = (12 if p8 else 8), "MFMA D -> VALU/mem"
                cset = regs_of(prev.ops[3])
                if ins.kind == "valu" and (cset & ins.wr): need, why = max(need, 7 if p8 else 3), why or "MFMA SrcC WAR"
        elif prev.kind == "salu":
            if 124 in prev.swr and ins.kind == "vmem" and "lds" in ins.mods: need, why = 1, "M0 -> LDS DMA"
        elif prev.kind == "vmem":
            if prev.mn.startswith("buffer_store") and prev.mn.endswith(("x4", "x3")):
                data = regs_of(prev.ops[0])
                if data & ins.wr and ins.kind in ("valu", "mfma"): need, why = 2, "store data WAR"
        if need - dist > worst:
            worst = need - dist; msg = f"{why}: needs {need} wait states after '{prev.text}' (line {prev.line}), has {dist}"
        dist += w
        if dist >= 14: break
    return worst, msg

class Mem:
    def __init__(self):
        self.regions = []
        self.next = 0x7f0000000000
    def add(self, name, arr):
        arr = np.ascontiguousarray(arr).view(np.uint8).reshape(-1)
        base = self.next
        self.next += (arr.nbytes + (1 << 22)) & ~((1 << 21) - 1)
        self.regions.append((base, arr, name))
        return base
    def find(self, addr):
        for base, arr, name in self.regions:
            if base <= addr < base + arr.nbytes + 1: return base, arr, name
        raise EmuError(f"address {addr:#x} in no buffer")

def bf16_to_f32(u16):
    return (u16.astype(U32) << 16).view(F32)
def f32_to_bf16(f):
    u = f.view(U32).astype(np.uint64)
    r = ((u + 0x7FFF + ((u >> 16) & 1)) >> 16).astype(U32) & 0xFFFF
    nan = np.isnan(f)
    r[nan] = 0x7FC0
    return r.astype(U32)

class Wave:
    def __init__(self, wg, wid):
        self.wg = wg; self.wid = wid
        self.V = np.full((512, 64), 0x7FC0BAD0, dtype=U32)
        self.S = [0xDEAD0000 + i for i in range(128)]
        self.scc = 0
        self.pc = 0
        self.done = False
        self.execm = np.ones(64, bool)
        self.S[126] = 0xFFFFFFFF; self.S[127] = 0xFFFFFFFF
        self.lgkm = deque()
        self.vm = deque()
        self.pend = {}
        self.spend = set()
        self.hist = deque(maxlen=24)
        self.count = 0
        self.nmfma = 0

class WG:
    def __init__(self, prog, labels, mem, kernarg_addr, wgid, nthreads, lds_bytes, entry, check=True, force_vcc=None):
        self.prog, self.labels, self.mem = prog, labels, mem
        self.lds = np.full(lds_bytes, 0xA5, dtype=np.uint8)
        self.lds_bytes = lds_bytes
        self.epoch = 0
        self.check = check
        nw = nthreads // 64
        self.waves = []
        ng = lds_bytes // 8 + 1
        self.wr_wave = np.full(ng, -1, np.int32)
        self.wr_pend = np.zeros(ng, bool)
        self.wr_epoch = np.full(ng, -1, np.int32)
        self.rd_pend = np.zeros((nw, ng), np.int32)
        self.rd_epoch = np.full((nw, ng), -1, np.int32)
        self.errors = []
        self.force_vcc = force_vcc
        self.taken = {}
        for w in range(nw):
            wv = Wave(self, w)
            wv.S[0] = kernarg_addr & 0xFFFFFFFF; wv.S[1] = kernarg_addr >> 32
            wv.S[2] = wgid
            wv.V[0] = LANES + 64 * w
            wv.pc = labels[entry]
            self.waves.append(wv)
    def err(self, wv, ins, msg):
        s = f"[wg wave {wv.wid}] line {ins.line}: {ins.text}\n      -> {msg}"
        self.errors.append(s)
        if len(self.errors) <= 20: print("EMU-ERR", s)
        if len(self.errors) > 200: raise EmuError("too many errors")
    def rs(self, wv, op):
        k = op[0]
        if k == "i": return op[1]
        if k == "s": return wv.S[op[1]]
        raise EmuError("scalar read of " + str(op))
    def rs64(self, wv, op):
        if op[0] == "i":
            v = op[1]
            if v & 0x80000000: v |= 0xFFFFFFFF00000000
            return v
        return wv.S[op[1]] | (wv.S[op[1] + 1] << 32)
    def ws(self, wv, op, val):
        wv.S[op[1]] = val & 0xFFFFFFFF
        if op[1] in (126, 127): self.sync_exec(wv)
    def ws64(self, wv, op, val):
        wv.S[op[1]] = val & 0xFFFFFFFF; wv.S[op[1] + 1] = (val >> 32) & 0xFFFFFFFF
        if op[1] == 126: self.sync_exec(wv)
    def sync_exec(self, wv):
        e = wv.S[126] | (wv.S[127] << 32)
        wv.execm = ((e >> np.arange(64, dtype=np.uint64).astype(object)) & 1).astype(bool) if False else np.array([(e >> i) & 1 for i in range(64)], bool)
    def rv(self, wv, op, off=0):
        k = op[0]
        if k == "v": return wv.V[op[1] + off]
        if k == "a": return wv.V[256 + op[1] + off]
        if k == "s": return np.full(64, wv.S[op[1] + off], U32)
        if k == "i": return np.full(64, op[1], U32)
        raise EmuError("vector read of " + str(op))
    def rf(self, wv, op, off=0):
        x = self.rv(wv, op, off).view(F32)
        if op[4]: x = np.abs(x)
        if op[3]: x = -x
        return x
    def wv_(self, wv, op, val, off=0):
        idx = op[1] + off + (256 if op[0] == "a" else 0)
        val = np.asarray(val)
        if val.dtype == F32: val = val.view(U32)
        else: val = val.astype(U32)
        if wv.execm.all(): wv.V[idx] = val
        else: wv.V[idx][wv.execm] = val[wv.execm]
    def mask_to_int(self, m):
        v = 0
        for i in np.nonzero(m)[0]: v |= 1 << int(i)
        return v
    def int_to_mask(self, v):
        return np.array([(v >> i) & 1 for i in range(64)], bool)
    def hazards(self, wv, ins):
        d, msg = hazard_need(wv.hist, ins)
        if d > 0: self.err(wv, ins, "hazard: " + msg)
    def pendcheck(self, wv, ins):
        if wv.spend and ((ins.srd | ins.swr) & wv.spend) and not ins.mn.startswith("s_load"):
            self.err(wv, ins, f"SGPR s{min((ins.srd | ins.swr) & wv.spend)} has a scalar load in flight")
        if wv.pend:
            bad = (ins.rd | ins.wr) & wv.pend.keys()
            if bad:
                r = min(bad)
                self.err(wv, ins, f"register {'v' if r < 256 else 'a'}{r % 256} has a load in flight: {wv.pend[r]}")
    def lds_read(self, wv, ins, addrs, nbytes):
        if addrs.size and (addrs.max() + nbytes > self.lds_bytes):
            self.err(wv, ins, f"LDS read out of range: {addrs.max()}"); return np.zeros(0, np.int64)
        g = np.unique((addrs[:, None] + np.arange(0, nbytes, 8)[None, :]).ravel() // 8)
        if self.check:
            if self.wr_pend[g].any(): self.err(wv, ins, f"LDS read of bytes with a write in flight (addr {g[self.wr_pend[g]][0]*8})")
            other = (self.wr_wave[g] != wv.wid) & (self.wr_wave[g] >= 0) & (self.wr_epoch[g] >= self.epoch)
            if other.any(): self.err(wv, ins, f"LDS read of bytes written by another wave in this barrier epoch (addr {g[other][0]*8})")
            self.rd_pend[wv.wid][g] += 1
        return g
    def lds_write(self, wv, ins, addrs, nbytes, dma):
        if addrs.size and (addrs.max() + nbytes > self.lds_bytes):
            self.err(wv, ins, f"LDS write out of range: {addrs.max()}"); return np.zeros(0, np.int64)
        g = np.unique((addrs[:, None] + np.arange(0, nbytes, 8 if nbytes >= 8 else 4)[None, :]).ravel() // 8)
        if self.check:
            for u in range(len(self.waves)):
                if u == wv.wid:
                    if dma and self.rd_pend[u][g].any(): self.err(wv, ins, f"LDS DMA over bytes this wave still reads (addr {g[self.rd_pend[u][g] > 0][0]*8})")
                    continue
                if self.rd_pend[u][g].any(): self.err(wv, ins, f"LDS write over bytes wave {u} has unretired reads of")
                elif (self.rd_epoch[u][g] >= self.epoch).any(): self.err(wv, ins, f"LDS write over bytes wave {u} read in this epoch (addr {g[self.rd_epoch[u][g] >= self.epoch][0]*8})")
            if (self.wr_pend[g]).any(): self.err(wv, ins, "LDS write over bytes with a write in flight")
            oth = (self.wr_wave[g] != wv.wid) & (self.wr_wave[g] >= 0) & (self.wr_epoch[g] >= self.epoch)
            if oth.any(): self.err(wv, ins, "LDS write over bytes another wave wrote in this epoch")
            self.wr_wave[g] = wv.wid; self.wr_pend[g] = True
        return g
    def retire(self, wv, q, n):
        while len(q) > n:
            kind, regs, g = q.popleft()
            for r in regs: wv.pend.pop(r, None)
            if self.check and g is not None and len(g):
                if kind == "r":
                    self.rd_pend[wv.wid][g] -= 1; self.rd_epoch[wv.wid][g] = self.epoch
                elif kind == "w":
                    self.wr_pend[g] = False; self.wr_epoch[g] = self.epoch
    def buf(self, wv, ins, srd, voff, soff, nbytes):
        base = wv.S[srd[1]] | ((wv.S[srd[1] + 1] & 0xFFFF) << 32)
        nrec = wv.S[srd[1] + 2]
        if wv.S[srd[1] + 3] != 0x20000: self.err(wv, ins, "bad SRD word3")
        imm = int(ins.mods.get("offset", 0), 0) if isinstance(ins.mods.get("offset", 0), str) else 0
        off = voff.astype(np.int64) + soff + imm
        rb, arr, name = self.mem.find(base)
        inr = (off + nbytes <= nrec) & wv.execm
        ab = base - rb + off
        bad = inr & ((ab < 0) | (ab + nbytes > arr.nbytes))
        if bad.any():
            self.err(wv, ins, f"access beyond real buffer {name}: offset {ab[bad][0]}"); inr = inr & ~bad
        if nbytes >= 4 and (ab[inr] % 4).any(): self.err(wv, ins, "misaligned buffer access")
        return arr, ab, inr
    def run(self, maxsteps=10**8):
        while True:
            live = [w for w in self.waves if not w.done]
            if not live: break
            for wv in live: self.run_wave(wv)
            self.epoch += 1
        return self.errors
    def run_wave(self, wv):
        prog = self.prog
        while True:
            ins = prog[wv.pc]
            wv.pc += 1
            wv.count += 1
            if self.check:
                self.hazards(wv, ins); self.pendcheck(wv, ins)
            r = self.step(wv, ins)
            w = 1
            if ins.mn == "s_nop": w = ins.ops[0][1] + 1
            wv.hist.append((ins, w))
            if r == "barrier": return
            if r == "end":
                wv.done = True; return
    def step(self, wv, ins):
        mn = ins.mn; o = ins.ops; k = ins.kind
        if k == "mfma": return self.mfma(wv, ins)
        if k == "valu": return self.valu(wv, ins)
        if k == "salu": return self.salu(wv, ins)
        if k == "ds": return self.ds(wv, ins)
        if k == "vmem": return self.vmem(wv, ins)
    def mfma(self, wv, ins):
        o = ins.ops
        if not wv.execm.all(): self.err(wv, ins, "MFMA with partial exec")
        wv.nmfma += 1
        def frag(op):
            b = op[1] + (256 if op[0] == "a" else 0)
            r = wv.V[b:b + 4]
            lo = (r << 16).view(F32); hi = (r & 0xFFFF0000).view(F32)
            x = np.empty((8, 64), F32); x[0::2] = lo; x[1::2] = hi
            return x
        if "32x32x16" in ins.mn:
            A = frag(o[1]); B = frag(o[2])
            Am = np.concatenate([A[:, :32].T, A[:, 32:].T], axis=1)
            Bm = np.concatenate([B[:, :32], B[:, 32:]], axis=0)
            D = Am.astype(np.float64) @ Bm.astype(np.float64)
            cb = o[3][1] + (256 if o[3][0] == "a" else 0)
            if o[3][0] == "i": C = np.zeros((16, 64), F32)
            else: C = wv.V[cb:cb + 16].view(F32)
            out = np.empty((16, 64), F32)
            for j in range(16):
                r0 = 8 * (j >> 2) + (j & 3)
                out[j, :32] = D[r0]; out[j, 32:] = D[r0 + 4]
            out = (out.astype(np.float64) + C).astype(F32)
            db = o[0][1] + (256 if o[0][0] == "a" else 0)
            wv.V[db:db + 16] = out.view(U32)
        else:
            raise EmuError("mfma shape")
    def valu(self, wv, ins):
        mn = ins.mn; o = ins.ops
        rf, rv, W = self.rf, self.rv, self.wv_
        m = ins.mods
        src0 = None
        if any(x in m for x in ("row_shr", "row_ror", "quad_perm", "row_bcast", "row_mirror", "row_half_mirror")):
            raise EmuError("DPP not emulated")
        cl = (lambda x: np.clip(np.nan_to_num(x, nan=0.0), 0, 1).astype(F32)) if "clamp" in m else (lambda x: x)
        if mn == "v_mov_b32" or mn == "v_accvgpr_read_b32" or mn == "v_accvgpr_write_b32" or mn == "v_accvgpr_mov_b32": W(wv, o[0], rv(wv, o[1]).copy())
        elif mn == "v_add_u32": W(wv, o[0], rv(wv, o[1]) + rv(wv, o[2]))
        elif mn == "v_sub_u32": W(wv, o[0], rv(wv, o[1]) - rv(wv, o[2]))
        elif mn == "v_subrev_u32": W(wv, o[0], rv(wv, o[2]) - rv(wv, o[1]))
        elif mn == "v_lshlrev_b32": W(wv, o[0], rv(wv, o[2]) << (rv(wv, o[1]) & 31))
        elif mn == "v_lshrrev_b32": W(wv, o[0], rv(wv, o[2]) >> (rv(wv, o[1]) & 31))
        elif mn == "v_ashrrev_i32": W(wv, o[0], (rv(wv, o[2]).view(np.int32) >> (rv(wv, o[1]) & 31).astype(np.int32)).view(U32))
        elif mn == "v_and_b32": W(wv, o[0], rv(wv, o[1]) & rv(wv, o[2]))
        elif mn == "v_or_b32": W(wv, o[0], rv(wv, o[1]) | rv(wv, o[2]))
        elif mn == "v_xor_b32": W(wv, o[0], rv(wv, o[1]) ^ rv(wv, o[2]))
        elif mn == "v_lshl_add_u32": W(wv, o[0], (rv(wv, o[1]) << (rv(wv, o[2]) & 31)) + rv(wv, o[3]))
        elif mn == "v_lshl_or_b32": W(wv, o[0], (rv(wv, o[1]) << (rv(wv, o[2]) & 31)) | rv(wv, o[3]))
        elif mn == "v_add_lshl_u32": W(wv, o[0], (rv(wv, o[1]) + rv(wv, o[2])) << (rv(wv, o[3]) & 31))
        elif mn == "v_add3_u32": W(wv, o[0], rv(wv, o[1]) + rv(wv, o[2]) + rv(wv, o[3]))
        elif mn == "v_and_or_b32": W(wv, o[0], (rv(wv, o[1]) & rv(wv, o[2])) | rv(wv, o[3]))
        elif mn == "v_bfe_u32": W(wv, o[0], (rv(wv, o[1]) >> (rv(wv, o[2]) & 31)) & ((U32(1) << (rv(wv, o[3]) & 31)) - U32(1)))
        elif mn in ("v_mul_u32_u24",): W(wv, o[0], (rv(wv, o[1]) & 0xFFFFFF) * (rv(wv, o[2]) & 0xFFFFFF))
        elif mn == "v_mad_u32_u24": W(wv, o[0], (rv(wv, o[1]) & 0xFFFFFF) * (rv(wv, o[2]) & 0xFFFFFF) + rv(wv, o[3]))
        elif mn == "v_mul_lo_u32": W(wv, o[0], rv(wv, o[1]) * rv(wv, o[2]))
        elif mn == "v_add_f32": W(wv, o[0], cl(rf(wv, o[1]) + rf(wv, o[2])))
        elif mn == "v_sub_f32": W(wv, o[0], cl(rf(wv, o[1]) - rf(wv, o[2])))
        elif mn == "v_subrev_f32": W(wv, o[0], cl(rf(wv, o[2]) - rf(wv, o[1])))
        elif mn == "v_mul_f32": W(wv, o[0], cl(rf(wv, o[1]) * rf(wv, o[2])))
        elif mn == "v_fma_f32": W(wv, o[0], cl((rf(wv, o[1]).astype(np.float64) * rf(wv, o[2]) + rf(wv, o[3])).astype(F32)))
        elif mn == "v_fmac_f32": W(wv, o[0], (rf(wv, o[1]).astype(np.float64) * rf(wv, o[2]) + rf(wv, o[0])).astype(F32))
        elif mn == "v_max_f32": W(wv, o[0], np.fmax(rf(wv, o[1]), rf(wv, o[2])))
        elif mn == "v_min_f32": W(wv, o[0], np.fmin(rf(wv, o[1]), rf(wv, o[2])))
        elif mn == "v_max3_f32": W(wv, o[0], np.fmax(np.fmax(rf(wv, o[1]), rf(wv, o[2])), rf(wv, o[3])))
        elif mn == "v_exp_f32": W(wv, o[0], np.exp2(rf(wv, o[1]).astype(np.float64)).astype(F32))
        elif mn == "v_log_f32": W(wv, o[0], np.log2(rf(wv, o[1]).astype(np.float64)).astype(F32))
        elif mn == "v_rcp_f32": W(wv, o[0], (1.0 / rf(wv, o[1]).astype(np.float64)).astype(F32))
        elif mn == "v_rsq_f32": W(wv, o[0], (1.0 / np.sqrt(rf(wv, o[1]).astype(np.float64))).astype(F32))
        elif mn == "v_sqrt_f32": W(wv, o[0], np.sqrt(rf(wv, o[1]).astype(np.float64)).astype(F32))
        elif mn == "v_cvt_f32_u32": W(wv, o[0], rv(wv, o[1]).astype(F32))
        elif mn == "v_cvt_f32_i32": W(wv, o[0], rv(wv, o[1]).view(np.int32).astype(F32))
        elif mn == "v_cvt_pk_bf16_f32":
            W(wv, o[0], f32_to_bf16(rf(wv, o[1]).copy()) | (f32_to_bf16(rf(wv, o[2]).copy()) << 16))
        elif mn in ("v_pk_mul_f32", "v_pk_add_f32", "v_pk_fma_f32"):
            res = []
            opsel_hi = m.get("op_sel_hi"); opsel = m.get("op_sel")
            def sel(idx, half):
                op = o[idx + 1]
                s = m.get("op_sel_hi" if half else "op_sel")
                bit = half
                if s: bit = int(s.strip("[]").split(",")[idx])
                if op[0] == "s" and op[2] == 1: return rf(wv, op)
                if op[0] == "i": return rf(wv, op)
                return rf(wv, op, bit)
            for half in (0, 1):
                a = rf(wv, o[1], half) if o[1][2] == 2 else rf(wv, o[1])
                b = rf(wv, o[2], half) if o[2][2] == 2 else rf(wv, o[2])
                if mn == "v_pk_mul_f32": res.append(a * b)
                elif mn == "v_pk_add_f32": res.append(a + b)
                else:
                    c = rf(wv, o[3], half) if o[3][2] == 2 else rf(wv, o[3])
                    res.append((a.astype(np.float64) * b + c).astype(F32))
            W(wv, o[0], res[0].copy(), 0); W(wv, o[0], res[1].copy(), 1)
        elif mn.startswith("v_cmp_"):
            _, _, cmp, ty = mn.split("_")
            if ty == "f32": a, b = rf(wv, o[1]), rf(wv, o[2])
            elif ty == "i32": a, b = rv(wv, o[1]).view(np.int32), rv(wv, o[2]).view(np.int32)
            else: a, b = rv(wv, o[1]), rv(wv, o[2])
            res = {"lt": a < b, "le": a <= b, "gt": a > b, "ge": a >= b, "eq": a == b, "ne": a != b,
                   "neq": ~(a == b), "nle": ~(a <= b), "nlt": ~(a < b), "ngt": ~(a > b), "nge": ~(a >= b)}[cmp] & wv.execm
            if self.force_vcc and self.force_vcc(wv, ins): res = res | wv.execm
            self.ws64(wv, o[0], self.mask_to_int(res))
        elif mn == "v_cndmask_b32":
            mk = self.int_to_mask(self.rs64(wv, o[3]) if len(o) > 3 else wv.S[106] | (wv.S[107] << 32))
            W(wv, o[0], np.where(mk, rv(wv, o[2]), rv(wv, o[1])))
        elif mn == "v_readfirstlane_b32":
            l = int(np.argmax(wv.execm)) if wv.execm.any() else 0
            wv.S[o[0][1]] = int(rv(wv, o[1])[l])
        elif mn == "v_readlane_b32": wv.S[o[0][1]] = int(rv(wv, o[1])[self.rs(wv, o[2]) & 63])
        elif mn == "v_permlane32_swap_b32":
            a = rv(wv, o[0]).copy(); b = rv(wv, o[1]).copy()
            na = a.copy(); nb = b.copy()
            na[32:] = b[:32]; nb[:32] = a[32:]
            W(wv, o[0], na); W(wv, o[1], nb)
        elif mn == "v_mbcnt_lo_u32_b32":
            x = self.rs(wv, o[1]); W(wv, o[0], np.array([bin(x & ((1 << min(i, 32)) - 1)).count("1") for i in range(64)], U32) + rv(wv, o[2]))
        elif mn == "v_mbcnt_hi_u32_b32":
            x = self.rs(wv, o[1]); W(wv, o[0], np.array([bin(x & ((1 << max(i - 32, 0)) - 1)).count("1") for i in range(64)], U32) + rv(wv, o[2]))
        else:
            raise EmuError("valu not emulated: " + ins.text)
    def salu(self, wv, ins):
        mn = ins.mn; o = ins.ops; rs = self.rs; M = 0xFFFFFFFF
        sx = lambda v: v - (1 << 32) if v & 0x80000000 else v
        if mn == "s_waitcnt":
            if "vmcnt" in ins.mods: self.retire(wv, wv.vm, ins.mods["vmcnt"])
            if "lgkmcnt" in ins.mods:
                self.retire(wv, wv.lgkm, ins.mods["lgkmcnt"])
                if ins.mods["lgkmcnt"] == 0: wv.spend.clear()
        elif mn == "s_barrier": return "barrier"
        elif mn == "s_endpgm":
            self.retire(wv, wv.vm, 0); self.retire(wv, wv.lgkm, 0)
            return "end"
        elif mn in ("s_nop", "s_setprio", "s_sleep"): pass
        elif mn == "s_mov_b32": self.ws(wv, o[0], rs(wv, o[1]))
        elif mn == "s_mov_b64": self.ws64(wv, o[0], self.rs64(wv, o[1]))
        elif mn == "s_movk_i32": self.ws(wv, o[0], sx(o[1][1] << 16 & M) >> 16 if o[1][1] < 0x10000 else o[1][1])
        elif mn == "s_add_u32": r = rs(wv, o[1]) + rs(wv, o[2]); self.ws(wv, o[0], r); wv.scc = int(r > M)
        elif mn == "s_addc_u32": r = rs(wv, o[1]) + rs(wv, o[2]) + wv.scc; self.ws(wv, o[0], r); wv.scc = int(r > M)
        elif mn == "s_sub_u32": r = rs(wv, o[1]) - rs(wv, o[2]); self.ws(wv, o[0], r); wv.scc = int(r < 0)
        elif mn == "s_subb_u32": r = rs(wv, o[1]) - rs(wv, o[2]) - wv.scc; self.ws(wv, o[0], r); wv.scc = int(r < 0)
        elif mn == "s_add_i32": r = sx(rs(wv, o[1])) + sx(rs(wv, o[2])); self.ws(wv, o[0], r); wv.scc = int(not -2**31 <= r < 2**31)
        elif mn == "s_sub_i32": r = sx(rs(wv, o[1])) - sx(rs(wv, o[2])); self.ws(wv, o[0], r); wv.scc = int(not -2**31 <= r < 2**31)
        elif mn == "s_mul_i32": self.ws(wv, o[0], sx(rs(wv, o[1])) * sx(rs(wv, o[2])))
        elif mn == "s_lshl_b32": r = (rs(wv, o[1]) << (rs(wv, o[2]) & 31)) & M; self.ws(wv, o[0], r); wv.scc = int(r != 0)
        elif mn == "s_lshr_b32": r = rs(wv, o[1]) >> (rs(wv, o[2]) & 31); self.ws(wv, o[0], r); wv.scc = int(r != 0)
        elif mn == "s_and_b32": r = rs(wv, o[1]) & rs(wv, o[2]); self.ws(wv, o[0], r); wv.scc = int(r != 0)
        elif mn == "s_or_b32": r = rs(wv, o[1]) | rs(wv, o[2]); self.ws(wv, o[0], r); wv.scc = int(r != 0)
        elif mn == "s_xor_b32": r = rs(wv, o[1]) ^ rs(wv, o[2]); self.ws(wv, o[0], r); wv.scc = int(r != 0)
        elif mn == "s_bfe_u32":
            c = rs(wv, o[2]); r = (rs(wv, o[1]) >> (c & 31)) & ((1 << ((c >> 16) & 0x7F)) - 1); self.ws(wv, o[0], r); wv.scc = int(r != 0)
        elif mn == "s_min_u32": a, b = rs(wv, o[1]), rs(wv, o[2]); self.ws(wv, o[0], min(a, b)); wv.scc = int(a < b)
        elif mn == "s_max_u32": a, b = rs(wv, o[1]), rs(wv, o[2]); self.ws(wv, o[0], max(a, b)); wv.scc = int(a > b)
        elif mn == "s_cselect_b32": self.ws(wv, o[0], rs(wv, o[1]) if wv.scc else rs(wv, o[2]))
        elif mn == "s_and_b64": r = self.rs64(wv, o[1]) & self.rs64(wv, o[2]); self.ws64(wv, o[0], r); wv.scc = int(r != 0)
        elif mn == "s_or_b64": r = self.rs64(wv, o[1]) | self.rs64(wv, o[2]); self.ws64(wv, o[0], r); wv.scc = int(r != 0)
        elif mn == "s_and_saveexec_b64":
            e = wv.S[126] | (wv.S[127] << 32); s = self.rs64(wv, o[1])
            self.ws64(wv, o[0], e); self.ws64(wv, ("s", 126, 2), e & s); wv.scc = int((e & s) != 0)
        elif mn.startswith("s_cmp_"):
            _, _, c, ty = mn.split("_")
            a, b = rs(wv, o[0]), rs(wv, o[1])
            if ty == "i32": a, b = sx(a), sx(b)
            wv.scc = int({"eq": a == b, "lg": a != b, "lt": a < b, "le": a <= b, "gt": a > b, "ge": a >= b}[c])
        elif mn == "s_getreg_b32": self.ws(wv, o[0], getattr(self, "xcc", wv.S[2] & 7))
        elif mn == "s_bitcmp1_b32": wv.scc = (rs(wv, o[0]) >> (rs(wv, o[1]) & 31)) & 1
        elif mn == "s_bitcmp0_b32": wv.scc = 1 - ((rs(wv, o[0]) >> (rs(wv, o[1]) & 31)) & 1)
        elif mn == "s_branch": wv.pc = self.labels[o[0][1]]
        elif mn == "s_cbranch_scc1":
            if wv.scc: wv.pc = self.labels[o[0][1]]
        elif mn == "s_cbranch_scc0":
            if not wv.scc: wv.pc = self.labels[o[0][1]]
        elif mn == "s_cbranch_vccnz":
            if (wv.S[106] | wv.S[107]) != 0:
                wv.pc = self.labels[o[0][1]]; self.taken[o[0][1]] = self.taken.get(o[0][1], 0) + 1
        elif mn == "s_cbranch_vccz":
            if (wv.S[106] | wv.S[107]) == 0: wv.pc = self.labels[o[0][1]]
        elif mn == "s_cbranch_execz":
            if (wv.S[126] | wv.S[127]) == 0: wv.pc = self.labels[o[0][1]]
        elif mn == "s_cbranch_execnz":
            if (wv.S[126] | wv.S[127]) != 0: wv.pc = self.labels[o[0][1]]
        elif mn.startswith("s_load_dword"):
            n = {"s_load_dword": 1, "s_load_dwordx2": 2, "s_load_dwordx4": 4, "s_load_dwordx8": 8, "s_load_dwordx16": 16}[mn]
            addr = self.rs64(wv, o[1]) + rs(wv, o[2])
            rb, arr, name = self.mem.find(addr)
            d = arr[addr - rb: addr - rb + 4 * n].view(U32)
            for i in range(n): wv.S[o[0][1] + i] = int(d[i]); wv.spend.add(o[0][1] + i)
            wv.lgkm.append(("s", [], None))
            if any(x[0] != "s" for x in wv.lgkm): pass
        else:
            raise EmuError("salu not emulated: " + ins.text)
    def ds(self, wv, ins):
        mn = ins.mn; o = ins.ops
        off = int(ins.mods.get("offset", "0"), 0)
        act = wv.execm
        def setpend(op, n):
            b = op[1] + (256 if op[0] == "a" else 0)
            regs = list(range(b, b + n))
            for r in regs: wv.pend[r] = f"line {ins.line}"
            return regs
        if mn in ("ds_read_b128", "ds_read_b64", "ds_read_b32"):
            n = {"ds_read_b128": 4, "ds_read_b64": 2, "ds_read_b32": 1}[mn]
            a = self.rv(wv, o[1]).astype(np.int64) + off
            if (a[act] % (4 * n if n > 1 else 4)).any(): self.err(wv, ins, "misaligned ds read")
            g = self.lds_read(wv, ins, a[act], 4 * n)
            a = np.where(act, a, 0); a = np.clip(a, 0, self.lds_bytes - 4 * n)
            data = self.lds[a[:, None] + np.arange(4 * n)[None, :]].view(U32).reshape(64, n)
            for i in range(n): self.wv_(wv, o[0], data[:, i].copy(), i)
            wv.lgkm.append(("r", setpend(o[0], n), g))
        elif mn == "ds_read_b64_tr_b16":
            if not act.all(): self.err(wv, ins, "tr read with partial exec")
            a = self.rv(wv, o[1]).astype(np.int64) + off
            if (a % 8).any(): self.err(wv, ins, "misaligned tr read")
            g = self.lds_read(wv, ins, a, 8)
            a = np.clip(a, 0, self.lds_bytes - 8)
            raw = self.lds[a[:, None] + np.arange(8)[None, :]].view(np.uint16).reshape(64, 4)
            out = np.empty((64, 4), np.uint16)
            for l in range(64):
                gbase = l & ~15; i = l & 15
                for r in range(4): out[l, r] = raw[gbase + 4 * r + (i >> 2), i & 3]
            d = out.view(U32).reshape(64, 2)
            self.wv_(wv, o[0], d[:, 0].copy(), 0); self.wv_(wv, o[0], d[:, 1].copy(), 1)
            wv.lgkm.append(("r", setpend(o[0], 2), g))
        elif mn in ("ds_write_b128", "ds_write_b64", "ds_write_b32"):
            n = {"ds_write_b128": 4, "ds_write_b64": 2, "ds_write_b32": 1}[mn]
            a = self.rv(wv, o[0]).astype(np.int64) + off
            g = self.lds_write(wv, ins, a[act], 4 * n, False)
            data = np.stack([self.rv(wv, o[1], i) for i in range(n)], 1).view(np.uint8).reshape(64, 4 * n)
            idx = a[act][:, None] + np.arange(4 * n)[None, :]
            if idx.size and idx.max() < self.lds_bytes: self.lds[idx] = data[act]
            wv.lgkm.append(("w", [], g))
        elif mn == "ds_swizzle_b32":
            assert off < 0x8000
            xm, om, am = (off >> 10) & 31, (off >> 5) & 31, off & 31
            src = (LANES & 32) | ((((LANES & 31) & am) | om) ^ xm)
            self.wv_(wv, o[0], self.rv(wv, o[1])[src].copy())
            wv.lgkm.append(("x", setpend(o[0], 1), None))
        else:
            raise EmuError("ds not emulated: " + ins.text)
    def vmem(self, wv, ins):
        mn = ins.mn; o = ins.ops; m = ins.mods
        if mn in ("buffer_wbl2", "buffer_inv"):
            wv.vm.append(("x", [], None)); return
        n = {"dword": 1, "dwordx2": 2, "dwordx4": 4, "ushort": 0}.get(mn.split("_")[-1])
        if mn.startswith("buffer_load"):
            if "lds" in m:
                voff = self.rv(wv, o[0]) if "offen" in m else np.zeros(64, U32)
                arr, ab, inr = self.buf(wv, ins, o[1], voff, self.rs(wv, o[2]), 4 * n)
                imm = int(m.get("offset", "0"), 0)
                la = (wv.S[124] & 0x3FFFC) + imm + np.arange(64, dtype=np.int64) * 4 * n
                if not wv.execm.all(): self.err(wv, ins, "LDS DMA with partial exec (untested)")
                g = self.lds_write(wv, ins, la, 4 * n, True)
                abc = np.where(inr, ab, 0)
                data = arr[abc[:, None] + np.arange(4 * n)[None, :]]
                data[~inr] = 0
                if la.max() + 4 * n <= self.lds_bytes: self.lds[la[:, None] + np.arange(4 * n)[None, :]] = data
                wv.vm.append(("w", [], g))
            else:
                voff = self.rv(wv, o[1]) if "offen" in m else np.zeros(64, U32)
                nb = 4 * n if n else 2
                arr, ab, inr = self.buf(wv, ins, o[2], voff, self.rs(wv, o[3]), nb)
                abc = np.where(inr, ab, 0)
                data = arr[abc[:, None] + np.arange(nb)[None, :]].copy()
                data[~inr] = 0
                if n:
                    d = data.view(U32).reshape(64, n)
                    for i in range(n): self.wv_(wv, o[0], d[:, i].copy(), i)
                else:
                    self.wv_(wv, o[0], data.view(np.uint16).reshape(64).astype(U32))
                b = o[0][1] + (256 if o[0][0] == "a" else 0)
                regs = list(range(b, b + max(n, 1)))
                for r in regs: wv.pend[r] = f"line {ins.line}"
                wv.vm.append(("l", regs, None))
        elif mn.startswith("buffer_store"):
            voff = self.rv(wv, o[1]) if "offen" in m else np.zeros(64, U32)
            arr, ab, inr = self.buf(wv, ins, o[2], voff, self.rs(wv, o[3]), 4 * n)
            data = np.stack([self.rv(wv, o[0], i) for i in range(n)], 1).view(np.uint8).reshape(64, 4 * n)
            idx = ab[inr][:, None] + np.arange(4 * n)[None, :]
            arr[idx] = data[inr]
            wv.vm.append(("st", [], None))
        elif mn == "buffer_atomic_add":
            voff = self.rv(wv, o[1]) if "offen" in m else np.zeros(64, U32)
            arr, ab, inr = self.buf(wv, ins, o[2], voff, self.rs(wv, o[3]), 4)
            data = self.rv(wv, o[0])
            for l in np.nonzero(inr)[0]:
                w32 = arr[ab[l]:ab[l] + 4].view(U32); w32[0] = w32[0] + data[l]
            wv.vm.append(("st", [], None))
        else:
            raise EmuError("vmem not emulated: " + ins.text)

def run_kernel(prog, labels, mem, kernarg_addr, entry, wgids, nthreads, lds, check=True, force_vcc=None, verbose=False):
    errs = []
    for g in wgids:
        wg = WG(prog, labels, mem, kernarg_addr, g, nthreads, lds, entry, check, force_vcc)
        e = wg.run()
        errs += e
        if verbose: print(f"wg {g}: instrs/wave {[w.count for w in wg.waves]} mfma {[w.nmfma for w in wg.waves]} epochs {wg.epoch} errors {len(e)} taken {wg.taken}")
    return errs
```

```python
from asmlib import *
WS_LNX = 0x0
WS_KV  = 0x200000
WS_CTX = 0x2200000
WS_H   = 0x3200000
WS_ST  = 0x3400000
WS_CSP = 0x3440000
WS_FLAG = 0x3460000
WS_H1  = 0x3500000
QSCALE = 1.4426950408889634 / (128 ** 0.5)
import struct
def fhex(x): return "0x%08x" % struct.unpack("<I", struct.pack("<f", x))[0]

KA = dict(x=0, ckv=8, wq=16, wuk=24, wuv=32, wo=40, bx=48, w1=56, b1=64, w2=72, b2=80, out=88, dbg=96, ws=104)

def srd(dst, ptr, size, add=None):
    o = []
    if add is None:
        o += [f"s_mov_b32 {s(dst)}, {s(ptr)}", f"s_mov_b32 {s(dst+1)}, {s(ptr+1)}"]
    else:
        o += [f"s_add_u32 {s(dst)}, {s(ptr)}, {add}", f"s_addc_u32 {s(dst+1)}, {s(ptr+1)}, 0"]
    o += [f"s_mov_b32 {s(dst+2)}, {size}", f"s_mov_b32 {s(dst+3)}, 0x20000"]
    return o

def kernel_text(name, blocks, order, nvgpr, accum, nsgpr=96):
    t = [f".globl {name}", ".p2align 8", f".type {name},@function", f"{name}:"]
    t += emit_blocks(order, blocks)
    return t

def descriptor(name, nvgpr, accum, nsgpr=100):
    return [f".amdhsa_kernel {name}",
            f"  .amdhsa_next_free_vgpr {nvgpr}",
            f"  .amdhsa_next_free_sgpr {nsgpr}",
            f"  .amdhsa_accum_offset {accum}",
            "  .amdhsa_group_segment_fixed_size 0",
            "  .amdhsa_kernarg_size 112",
            "  .amdhsa_user_sgpr_count 2",
            "  .amdhsa_user_sgpr_kernarg_segment_ptr 1",
            "  .amdhsa_system_sgpr_workgroup_id_x 1",
            "  .amdhsa_float_denorm_mode_32 3",
            ".end_amdhsa_kernel"]

def unpack_bf16(dst_lo, dst_hi, src):
    return [f"v_lshlrev_b32 {v(dst_lo)}, 16, {v(src)}", f"v_and_b32 {v(dst_hi)}, 0xffff0000, {v(src)}"]

def swz_xor(x): return (x << 10) | 0x1F

import os
STAMPS = os.environ.get("STAMPS", "0") == "1"
WS_STAMP = 0x3F00000
def stamp(k):
    if not STAMPS: return []
    o = [f"s_memtime s[{80+2*k}:{81+2*k}]"]
    if k == 0: o += ["s_memrealtime s[98:99]"]
    return o
def stamp_store(n, region=0, wsptr_ka=104):
    if not STAMPS: return []
    o = ["s_waitcnt vmcnt(0) lgkmcnt(0)", f"s_memtime s[{80+2*n}:{81+2*n}]", "s_memrealtime s[100:101]",
         f"s_load_dwordx2 s[64:65], s[0:1], {wsptr_ka}", "s_waitcnt lgkmcnt(0)",
         f"s_add_u32 s68, s64, {WS_STAMP + region * 0x10000}", "s_addc_u32 s69, s65, 0", "s_mov_b32 s70, 0x100000", "s_mov_b32 s71, 0x20000",
         "s_mov_b64 exec, -1",
         "v_lshrrev_b32 v241, 6, v0", "v_lshlrev_b32 v241, 6, v241", "s_lshl_b32 s72, s2, 8", "v_add_u32 v241, s72, v241"]
    vals = ["s98", "s100"] + [f"s{80+2*k}" for k in range(n + 1)]
    for i, sv in enumerate(vals):
        o += [f"v_mov_b32 v240, {sv}", f"buffer_store_dword v240, v241, s[68:71], 0 offen offset:{4*i}"]
    o += ["s_waitcnt vmcnt(0)"]
    return o
```

```python
from asmlib import *
import os as _os
WS_BASE = int(_os.environ.get('WS_BASE', '0'), 0)
WS_LNX = WS_BASE + 0x0
WS_KV  = WS_BASE + 0x200000
WS_CTX = WS_BASE + 0x2200000
WS_H   = WS_BASE + 0x3200000
WS_ST  = WS_BASE + 0x3400000
WS_CSP = WS_BASE + 0x3440000
WS_FLAG = WS_BASE + 0x3460000
WS_H1  = WS_BASE + 0x3500000
WS_WOT = WS_BASE + 0x4000000
WS_W2T = WS_BASE + 0x4400000
WS_PART = WS_BASE + 0x4800000
QSCALE = 1.4426950408889634 / (128 ** 0.5)
import struct
def fhex(x): return "0x%08x" % struct.unpack("<I", struct.pack("<f", x))[0]

KA = dict(x=0, ckv=8, wq=16, wuk=24, wuv=32, wo=40, bx=48, w1=56, b1=64, w2=72, b2=80, out=88, dbg=96, ws=104)

def srd(dst, ptr, size, add=None):
    o = []
    if add is None:
        o += [f"s_mov_b32 {s(dst)}, {s(ptr)}", f"s_mov_b32 {s(dst+1)}, {s(ptr+1)}"]
    else:
        o += [f"s_add_u32 {s(dst)}, {s(ptr)}, {add}", f"s_addc_u32 {s(dst+1)}, {s(ptr+1)}, 0"]
    o += [f"s_mov_b32 {s(dst+2)}, {size}", f"s_mov_b32 {s(dst+3)}, 0x20000"]
    return o

def kernel_text(name, blocks, order, nvgpr, accum, nsgpr=96):
    t = [f".globl {name}", ".p2align 8", f".type {name},@function", f"{name}:"]
    t += emit_blocks(order, blocks)
    return t

def descriptor(name, nvgpr, accum, nsgpr=100):
    return [f".amdhsa_kernel {name}",
            f"  .amdhsa_next_free_vgpr {nvgpr}",
            f"  .amdhsa_next_free_sgpr {nsgpr}",
            f"  .amdhsa_accum_offset {accum}",
            "  .amdhsa_group_segment_fixed_size 0",
            "  .amdhsa_kernarg_size 112",
            "  .amdhsa_user_sgpr_count 2",
            "  .amdhsa_user_sgpr_kernarg_segment_ptr 1",
            "  .amdhsa_system_sgpr_workgroup_id_x 1",
            "  .amdhsa_float_denorm_mode_32 3",
            ".end_amdhsa_kernel"]

def unpack_bf16(dst_lo, dst_hi, src):
    return [f"v_lshlrev_b32 {v(dst_lo)}, 16, {v(src)}", f"v_and_b32 {v(dst_hi)}, 0xffff0000, {v(src)}"]

def swz_xor(x): return (x << 10) | 0x1F

import os
STAMPS = os.environ.get("STAMPS", "0") == "1"
WS_STAMP = 0x3F00000
def stamp(k):
    if not STAMPS: return []
    o = [f"s_memtime s[{80+2*k}:{81+2*k}]"]
    if k == 0: o += ["s_memrealtime s[98:99]"]
    return o
def stamp_store(n, region=0, wsptr_ka=104):
    if not STAMPS: return []
    o = ["s_waitcnt vmcnt(0) lgkmcnt(0)", f"s_memtime s[{80+2*n}:{81+2*n}]", "s_memrealtime s[100:101]",
         f"s_load_dwordx2 s[64:65], s[0:1], {wsptr_ka}", "s_waitcnt lgkmcnt(0)",
         f"s_add_u32 s68, s64, {WS_STAMP + region * 0x10000}", "s_addc_u32 s69, s65, 0", "s_mov_b32 s70, 0x100000", "s_mov_b32 s71, 0x20000",
         "s_mov_b64 exec, -1",
         "v_lshrrev_b32 v241, 6, v0", "v_lshlrev_b32 v241, 6, v241", "s_lshl_b32 s72, s2, 8", "v_add_u32 v241, s72, v241"]
    vals = ["s98", "s100"] + [f"s{80+2*k}" for k in range(n + 1)]
    for i, sv in enumerate(vals):
        o += [f"v_mov_b32 v240, {sv}", f"buffer_store_dword v240, v241, s[68:71], 0 offen offset:{4*i}"]
    o += ["s_waitcnt vmcnt(0)"]
    return o

NORT = os.environ.get('NORT', '0') == '1'
```
